```python
import torch

def _softmax(x, axis=-1):
    return torch.softmax(x, dim=axis)
def _gelu(x):
    return torch.nn.functional.gelu(x, approximate="tanh")
def _silu(x):
    return torch.nn.functional.silu(x)
def _sigmoid(x):
    return torch.sigmoid(x)
def _layernorm(x, axis=-1, eps=1e-5):
    m = x.mean(dim=axis, keepdim=True)
    v = x.var(dim=axis, keepdim=True, unbiased=False)
    return (x - m) / torch.sqrt(v + eps)
def _scatter_add(tgt, idx, src, axis=0):
    return tgt.clone().index_add_(axis, idx, src)
def _segment_sum(src, seg, n):
    out = torch.zeros((n,) + src.shape[1:], dtype=src.dtype)
    return out.index_add_(0, seg, src)
def _pad(x, pw):
    flat = tuple(v for pair in reversed(pw) for v in pair)
    return torch.nn.functional.pad(x, flat)

kernel_name = 'gated_mix__ssm_conv_h3__softmax_full_mha__prompt'

def setup_inputs():

    _w = (lambda a: (lambda t: t.to(torch.bfloat16) if t.is_floating_point() else t)(torch.as_tensor(a)))
    def _A_setup():
        B, S, D = 1, 2048, 512
        ks = 4
        return {
            "q": _w((lambda *s: torch.randn(*s, dtype=torch.bfloat16) * 0.05)(B, S, D)),
            "k": _w((lambda *s: torch.randn(*s, dtype=torch.bfloat16) * 0.4)(B, S, D)),
            "v": _w((lambda *s: torch.randn(*s, dtype=torch.bfloat16) * 0.4)(B, S, D)),
            "shift_k": _w((lambda *s: torch.randn(*s, dtype=torch.bfloat16) * 0.4)(D, ks) * 0.5),
            "ssm_k": _w((lambda *s: torch.randn(*s, dtype=torch.bfloat16) * 1.6)(D, S) * (1.0 / S ** 0.5)),
            "ssm_D": _w((lambda *s: torch.randn(*s, dtype=torch.bfloat16) * 0.4)(D)),
        }
    _A_in = _A_setup()

    def _B_setup():
        B, S, D = 1, 2048, 512
        return {
            "x": _w((lambda *s: torch.randn(*s, dtype=torch.bfloat16) * 0.05)(B, S, D)),
            "wqkv": _w((lambda *s: torch.randn(*s, dtype=torch.bfloat16) * 0.8)(D, 3 * D)),
            "wo": _w((lambda *s: torch.randn(*s, dtype=torch.bfloat16) * 0.05)(D, D)),
        }
    _B_in = _B_setup()

    return {
        "A_q": _A_in["q"],
        "A_k": _A_in["k"],
        "A_v": _A_in["v"],
        "A_shift_k": _A_in["shift_k"],
        "A_ssm_k": _A_in["ssm_k"],
        "A_ssm_D": _A_in["ssm_D"],
        "B_x": _B_in["x"],
        "B_wqkv": _B_in["wqkv"],
        "B_wo": _B_in["wo"],
        "gate_w": _w((lambda *s: torch.randn(*s, dtype=torch.bfloat16) * 0.05)(512) * 16.0),
    }

def reference(A_q, A_k, A_v, A_shift_k, A_ssm_k, A_ssm_D, B_x, B_wqkv, B_wo, gate_w):
    def _A_ref(q, k, v, shift_k, ssm_k, ssm_D):
        B, S, D = q.shape
        ks = shift_k.shape[-1]
        k_pad = _pad(k, ((0, 0), (ks - 1, 0), (0, 0)))
        k_shift = torch.zeros_like(k)
        for t in range(ks):
            k_shift = k_shift + k_pad[:, t:t + S, :] * shift_k[:, ks - 1 - t][None, None, :]
        kv = k_shift * v
        L = 2 * S
        kv_pad = _pad(kv, ((0, 0), (0, S), (0, 0)))
        kf_pad = _pad(ssm_k, ((0, 0), (0, S)))
        kv_f = (lambda x, axes=(-2,-1): torch.fft.rfft2(x.float(), dim=axes))(kv_pad[:, None, :, :], axes=(1, 2))
        kf_f = (lambda x, axes=(-2,-1): torch.fft.rfft2(x.float(), dim=axes))(kf_pad[:, None, :], axes=(1, 2))
        kf_f = (lambda x, *d: x.permute(*d))(kf_f, 1, 2, 0)
        y_f = kv_f * kf_f[None, :, :, :]
        y = (lambda x, s, axes=(-2,-1): torch.fft.irfft2(x, s=s, dim=axes).to(torch.bfloat16))(y_f, (1, L), axes=(1, 2))[:, 0, :S, :]
        y = y + kv * ssm_D[None, None, :]
        return q * y

    def _B_ref(x, wqkv, wo):
        B, S, D = x.shape
        H = 32; Dh = D // H
        qkv = (lambda x, *d: x.permute(*d))((x @ wqkv).reshape(B, S, 3, H, Dh), 2, 0, 3, 1, 4)
        q, k, v = qkv[0], qkv[1], qkv[2]
        scale = Dh ** -0.5
        scores = torch.einsum("bhqd,bhkd->bhqk", q, k) * scale
        p = _softmax(scores, axis=-1)
        o = torch.einsum("bhqk,bhkd->bhqd", p, v)
        return (lambda x, *d: x.permute(*d))(o, 0, 2, 1, 3).reshape(B, S, D) @ wo

    x = A_q
    g = _sigmoid((x * gate_w).sum(-1, keepdims=True))
    a = _A_ref(x, A_k, A_v, A_shift_k, A_ssm_k, A_ssm_D)
    b = _B_ref(x, B_wqkv, B_wo)
    return g * a + (1 - g) * b
```

```python
import re

VM_MAX = 63
LGKM_MAX = 15


class R:
    __slots__ = ("k", "i", "n")

    def __init__(self, k, i, n=1):
        self.k, self.i, self.n = k, i, n

    def __str__(self):
        return f"{self.k}{self.i}" if self.n == 1 else f"{self.k}[{self.i}:{self.i + self.n - 1}]"

    __repr__ = __str__

    def __getitem__(self, x):
        if isinstance(x, slice):
            a = x.start or 0
            b = self.n if x.stop is None else x.stop
            assert 0 <= a < b <= self.n, (x, self.n)
            return R(self.k, self.i + a, b - a)
        assert 0 <= x < self.n, (x, self.n)
        return R(self.k, self.i + x, 1)


class Alloc:
    def __init__(self, kind, start, limit):
        self.k, self.cur, self.limit, self.hi = kind, start, limit, start

    def __call__(self, n=1, align=None):
        if align is None:
            align = 1 if n == 1 else (2 if self.k == "v" else (4 if n >= 4 else 2))
        self.cur = (self.cur + align - 1) // align * align
        r = R(self.k, self.cur, n)
        self.cur += n
        self.hi = max(self.hi, self.cur)
        assert self.cur <= self.limit, f"out of {self.k} registers ({self.cur} > {self.limit})"
        return r

    def mark(self):
        return self.cur

    def release(self, m):
        self.cur = m


_REG1 = re.compile(r"^([vsa])(\d+)$")
_REGN = re.compile(r"^([vsa])\[(\d+):(\d+)\]$")
TRANS = ("v_exp_f32", "v_log_f32", "v_rcp_f32", "v_rsq_f32", "v_sqrt_f32", "v_sin_f32", "v_cos_f32")


def regs_of(tok):
    tok = tok.strip()
    t = tok
    if t.startswith("-"):
        t = t[1:]
    if t.startswith("abs(") and t.endswith(")"):
        t = t[4:-1]
    if t.startswith("|") and t.endswith("|"):
        t = t[1:-1]
    m = _REG1.match(t)
    if m:
        return {(m.group(1), int(m.group(2)))}
    m = _REGN.match(t)
    if m:
        return {(m.group(1), i) for i in range(int(m.group(2)), int(m.group(3)) + 1)}
    if t in ("vcc",):
        return {("x", "vcc_lo"), ("x", "vcc_hi")}
    if t in ("vcc_lo", "vcc_hi", "m0", "exec_lo", "exec_hi"):
        return {("x", t)}
    if t == "exec":
        return {("x", "exec_lo"), ("x", "exec_hi")}
    return set()


class Ins:
    __slots__ = ("text", "mn", "ops", "mods", "defs", "uses", "cls", "passes", "label", "srcc", "wait", "nops", "tag")

    def __init__(self, text):
        self.text = text
        self.label = None
        self.wait = None
        self.nops = 0
        self.tag = None
        t = text.split(";")[0].strip()
        if t.endswith(":") or t.startswith("."):
            self.label, self.mn, self.ops, self.mods = t, "", [], ""
            self.defs, self.uses, self.cls, self.passes, self.srcc = set(), set(), "label", 0, set()
            return
        sp = t.split(None, 1)
        self.mn = sp[0]
        rest = sp[1] if len(sp) > 1 else ""
        ops = [o.strip() for o in rest.split(",")] if rest else []
        mods = ""
        if ops:
            last = ops[-1].split(None, 1)
            if len(last) > 1 and self.mn not in ("s_waitcnt",):
                ops[-1], mods = last[0], last[1]
        self.ops, self.mods = ops, mods
        self.passes = 0
        self.srcc = set()
        self._classify()

    def _classify(self):
        mn, ops = self.mn, self.ops
        rs = [regs_of(o) for o in ops]
        defs, uses = set(), set()
        if mn.startswith("v_mfma"):
            self.cls = "mfma"
            if "32x32x16" in mn or "32x32x8" in mn:
                self.passes = 8
            elif "16x16x32" in mn or "16x16x16" in mn:
                self.passes = 4
            else:
                raise ValueError("unknown mfma " + mn)
            defs = rs[0]
            uses = rs[1] | rs[2] | rs[3]
            self.srcc = rs[3]
        elif mn.startswith("v_"):
            self.cls = "valu"
            if mn.startswith("v_cmp"):
                defs = rs[0]
                uses = set().union(*rs[1:]) if len(rs) > 1 else set()
            elif mn.startswith("v_permlane") and "swap" in mn:
                defs = rs[0] | rs[1]
                uses = rs[0] | rs[1]
            else:
                defs = rs[0]
                uses = set().union(*rs[1:]) if len(rs) > 1 else set()
                if "_co_" in mn:
                    defs = rs[0] | rs[1]
                    uses = set().union(*rs[2:])
                if mn.startswith(("v_fmac", "v_mac", "v_pk_fmac", "v_dot2c", "v_writelane")):
                    uses |= rs[0]
                if "_d16" in mn:
                    uses |= rs[0]
        elif mn.startswith("ds_"):
            self.cls = "lds"
            if mn.startswith(("ds_write", "ds_add", "ds_max", "ds_min")) and "rtn" not in mn:
                uses = set().union(*rs)
            else:
                defs = rs[0]
                uses = set().union(*rs[1:]) if len(rs) > 1 else set()
                if "_d16" in mn:
                    uses |= rs[0]
        elif mn.startswith(("buffer_", "global_")):
            self.cls = "vmem"
            if "store" in mn or "atomic" in mn:
                uses = set().union(*rs)
            elif " lds" in (" " + self.mods):
                uses = set().union(*rs) | {("x", "m0")}
            else:
                defs = rs[0]
                uses = set().union(*rs[1:])
                if "_d16" in mn:
                    uses |= rs[0]
        elif mn.startswith(("s_load", "s_buffer_load")):
            self.cls = "smem"
            defs = rs[0]
            uses = set().union(*rs[1:])
        elif mn in ("s_waitcnt", "s_nop", "s_barrier", "s_endpgm", "s_setprio", "s_sleep") or mn.startswith(("s_branch", "s_cbranch")):
            self.cls = "sctrl"
        elif mn.startswith("s_"):
            self.cls = "salu"
            if mn.startswith("s_cmp"):
                uses = set().union(*rs)
            else:
                defs = rs[0]
                uses = set().union(*rs[1:]) if len(rs) > 1 else set()
                if "saveexec" in mn:
                    defs |= {("x", "exec_lo"), ("x", "exec_hi")}
                    uses |= {("x", "exec_lo"), ("x", "exec_hi")}
        else:
            raise ValueError("cannot classify: " + self.text)
        self.defs, self.uses = defs, uses


def _vg(s):
    return {r for r in s if r[0] in ("v", "a")}


def _sg(s):
    return {r for r in s if r[0] == "s" or r[0] == "x"}


MF_ABV = {2: 5, 4: 8, 8: 12, 16: 20}
MF_COV = {2: 4, 4: 6, 8: 10, 16: 18}
MF_WAR = {2: 1, 4: 3, 8: 7, 16: 15}


def need_ws(p, c):
    w = 0
    if p.cls == "valu":
        vd = _vg(p.defs)
        if c.cls == "mfma" and vd & c.uses:
            w = max(w, 2)
        if c.cls == "valu":
            if p.mn in TRANS and c.mn not in TRANS and vd & c.uses:
                w = max(w, 1)
            if c.mn.startswith(("v_readlane", "v_readfirstlane")) and vd & c.uses:
                w = max(w, 1)
            if (c.mn.startswith("v_permlane") or "dpp" in c.mn or "dpp" in c.mods or "row_" in c.mods or "quad_perm" in c.mods) and vd & c.uses:
                w = max(w, 2)
        sd = _sg(p.defs)
        if sd:
            if c.cls in ("valu", "mfma") and sd & c.uses:
                w = max(w, 4 if c.mn.startswith(("v_readlane", "v_writelane")) else 2)
            if c.cls == "vmem" and sd & c.uses:
                w = max(w, 5)
            if c.cls in ("salu", "sctrl", "smem", "lds") and sd & c.uses:
                w = max(w, 2)
    if p.cls == "mfma":
        d = p.defs
        if c.cls == "mfma":
            if d & c.srcc:
                if d == c.srcc and p.mn == c.mn:
                    w = max(w, 2 if p.passes == 2 else 0)
                else:
                    w = max(w, MF_COV[p.passes])
            if d & regs_ab(c):
                w = max(w, MF_ABV[p.passes])
            if d & c.defs and d != c.defs:
                w = max(w, MF_ABV[p.passes])
        elif c.cls in ("valu", "vmem", "lds"):
            if d & (c.uses | c.defs):
                w = max(w, MF_ABV[p.passes])
        if c.cls == "valu" and p.srcc & c.defs:
            w = max(w, MF_WAR[p.passes])
    if p.cls == "salu" and ("x", "m0") in p.defs:
        if c.cls == "vmem" and ("x", "m0") in c.uses:
            w = max(w, 1)
    if p.cls == "vmem" and "store" in p.mn and ("x3" in p.mn or "x4" in p.mn):
        data = regs_of(p.ops[1]) if p.mn.startswith("global") else regs_of(p.ops[0])
        if data & c.defs:
            w = max(w, 2)
    if p.cls == "lds" and p.mn.startswith("ds_write") and ("b128" in p.mn or "b96" in p.mn):
        data = regs_of(p.ops[1])
        if data & c.defs:
            w = max(w, 2)
    return w


def regs_ab(c):
    return regs_of(c.ops[1]) | regs_of(c.ops[2])


class Kern:
    def __init__(self, name):
        self.name = name
        self.ins = []
        self.v = Alloc("v", 0, 256)
        self.s = Alloc("s", 0, 100)
        self._loops = []

    def __call__(self, text, tag=None):
        for ln in text.strip().split("\n"):
            ln = ln.strip()
            if not ln or ln.startswith(";"):
                continue
            i = Ins(ln)
            i.tag = tag
            self.ins.append(i)

    def label(self, l):
        self.ins.append(Ins(l + ":"))

    def wait(self, vm=None, lgkm=None):
        parts = []
        if vm is not None:
            parts.append(f"vmcnt({vm})")
        if lgkm is not None:
            parts.append(f"lgkmcnt({lgkm})")
        self(f"s_waitcnt {' '.join(parts)}")

    def loop_begin(self, label):
        self._loops.append((label, len(self.ins)))
        self.label(label)

    def loop_end(self):
        label, start = self._loops.pop()
        self.ins[start].tag = ("loop", len(self.ins))

    def _linear(self):
        out = []
        i = 0
        n = len(self.ins)
        while i < n:
            ins = self.ins[i]
            if ins.cls == "label" and isinstance(ins.tag, tuple) and ins.tag[0] == "loop":
                end = ins.tag[1]
                body = self.ins[i:end]
                for b in body:
                    assert not (b is not ins and b.cls == "label" and isinstance(b.tag, tuple)), "nested loops unsupported"
                out += body + body
                i = end
            else:
                out.append(ins)
                i += 1
        return out

    def finalize(self):
        lin = self._linear()
        for ins in self.ins:
            ins.wait, ins.nops = None, 0
        vmq, lgq = [], []

        def need(q, regs):
            idx = -1
            for j, e in enumerate(q):
                if e[0] & regs:
                    idx = j
            return idx

        for ins in lin:
            if ins.cls == "label":
                continue
            if ins.mn == "s_waitcnt":
                m = re.search(r"vmcnt\((\d+)\)", ins.text)
                if m:
                    nn = int(m.group(1))
                    del vmq[: max(0, len(vmq) - nn)]
                m = re.search(r"lgkmcnt\((\d+)\)", ins.text)
                if m:
                    nn = int(m.group(1))
                    del lgq[: max(0, len(lgq) - nn)]
                continue
            if ins.mn in ("s_endpgm",):
                vmq, lgq = [], []
                continue
            regs = ins.defs | ins.uses
            wv = wl = None
            j = need(vmq, regs)
            if j >= 0:
                wv = len(vmq) - 1 - j
            j = need(lgq, regs)
            if j >= 0:
                wl = len(lgq) - 1 - j
                if any(e[1] for e in lgq):
                    wl = 0
            if ins.cls == "vmem":
                rem = len(vmq) if wv is None else min(len(vmq), wv)
                if rem + 1 > VM_MAX:
                    wv = VM_MAX - 1
            if ins.cls in ("lds", "smem"):
                rem = len(lgq) if wl is None else min(len(lgq), wl)
                if rem + 2 > LGKM_MAX:
                    wl = LGKM_MAX - 3
            if wv is not None or wl is not None:
                ow = ins.wait or (None, None)
                nv = wv if ow[0] is None else (ow[0] if wv is None else min(wv, ow[0]))
                nl = wl if ow[1] is None else (ow[1] if wl is None else min(wl, ow[1]))
                ins.wait = (nv, nl)
            if wv is not None:
                del vmq[: max(0, len(vmq) - wv)]
            if wl is not None:
                del lgq[: max(0, len(lgq) - wl)]
            if ins.cls == "vmem":
                vmq.append((set(ins.defs), False))
            elif ins.cls == "lds":
                lgq.append((set(ins.defs), False))
            elif ins.cls == "smem":
                lgq.append((set(ins.defs), True))
                if "dword " not in ins.mn + " " and ins.mn != "s_load_dword":
                    lgq.append((set(), True))
        for _ in range(8):
            changed = False
            hist = []
            for ins in lin:
                if ins.cls == "label":
                    continue
                pre = (1 if ins.wait else 0) + ins.nops
                dist = pre
                req = 0
                for p in reversed(hist):
                    if dist > 24:
                        break
                    w = need_ws(p, ins)
                    if w > dist:
                        req = max(req, w - dist)
                    dist += 1 + (1 if p.wait else 0) + p.nops + (int(p.ops[0]) if p.mn == "s_nop" else 0)
                if req > 0:
                    ins.nops += req
                    changed = True
                hist.append(ins)
                if len(hist) > 40:
                    hist.pop(0)
            if not changed:
                break
        else:
            raise RuntimeError("wait-state insertion did not converge")

    def text(self):
        out = []
        for ins in self.ins:
            if ins.wait:
                parts = []
                if ins.wait[0] is not None:
                    parts.append(f"vmcnt({ins.wait[0]})")
                if ins.wait[1] is not None:
                    parts.append(f"lgkmcnt({ins.wait[1]})")
                out.append("    s_waitcnt " + " ".join(parts))
            n = ins.nops
            while n > 0:
                kk = min(n, 16)
                out.append(f"    s_nop {kk - 1}")
                n -= kk
            out.append(ins.text if ins.cls == "label" else "    " + ins.text)
        return "\n".join(out) + "\n"

    def stats(self):
        from collections import Counter
        c = Counter(i.cls for i in self.ins)
        c["nops"] = sum(i.nops for i in self.ins)
        c["waits"] = sum(1 for i in self.ins if i.wait)
        return dict(c)
```

```python
S, D, H, DH = 2048, 512, 32, 16
MB = 1 << 20
WS_Q = 0
WS_K = 2 * MB
WS_VT = 4 * MB
WS_O = 6 * MB
WS_KVT = 8 * MB
WS_ZT = 10 * MB
WS_G = 12 * MB
WS_KN = 12 * MB + 65536
WS_END = 13 * MB
QSCALE = 0.25 * 1.4426950408889634
KA = dict(q=0, k=8, v=16, shift=24, ssmk=32, ssmd=40, bx=48, wqkv=56, wo=64, gatew=72, out=80, dbg=88, ws=96)
```

```python
import struct
from asmlib import Kern, R
from common import *


def f32hex(x):
    return "0x%08x" % struct.unpack("<I", struct.pack("<f", x))[0]


def srd(k, sd, sp, nbytes):
    k(f"s_mov_b32 {sd[0]}, {sp[0]}")
    k(f"s_and_b32 {sd[1]}, {sp[1]}, 0xffff")
    k(f"s_mov_b32 {sd[2]}, {nbytes}")
    k(f"s_mov_b32 {sd[3]}, 0x00020000")


def gemm_role(k):
    sX, sW, sWS = R("s", 4, 2), R("s", 6, 2), R("s", 8, 2)
    srdX, srdW, srdWS = R("s", 12, 4), R("s", 16, 4), R("s", 20, 4)
    sMt, sNt, sWv, sT, sLdsW, sGA, sGB, sOut = (R("s", i) for i in range(24, 32))
    sWr, sWc, sT2, sSec = (R("s", i) for i in range(32, 36))
    k(f"s_load_dwordx2 {sX}, s[0:1], {KA['q']}")
    k(f"s_load_dwordx2 {sW}, s[0:1], {KA['wqkv']}")
    k(f"s_load_dwordx2 {sWS}, s[0:1], {KA['ws']}")
    k.v.cur = 1
    vLane = k.v()
    vT0, vT1, vT2, vT3 = (k.v() for _ in range(4))
    vOffA = [k.v(), k.v()]
    vOffB = k.v()
    vXa = [k.v() for _ in range(4)]
    vWa = [k.v() for _ in range(2)]
    vXc = [k.v() for _ in range(4)]
    vWc = [k.v() for _ in range(2)]
    vSt = k.v()
    k(f"v_and_b32 {vLane}, 63, v0")
    k(f"v_lshrrev_b32 {vT0}, 6, v0")
    k(f"v_readfirstlane_b32 {sWv}, {vT0}")
    k(f"s_mov_b32 {sT}, 0x15555556")
    k(f"s_mul_hi_u32 {sMt}, s2, {sT}")
    k(f"s_mul_i32 {sT}, {sMt}, 12")
    k(f"s_sub_u32 {sNt}, s2, {sT}")
    k(f"s_lshr_b32 {sWr}, {sWv}, 1")
    k(f"s_and_b32 {sWc}, {sWv}, 1")
    k(f"v_lshrrev_b32 {vT0}, 3, {vLane}")
    k(f"v_and_b32 {vT1}, 7, {vLane}")
    k(f"v_lshrrev_b32 {vT2}, 4, {vLane}")
    k(f"v_xor_b32 {vT3}, {vT1}, {vT2}")
    k(f"v_lshlrev_b32 {vT3}, 4, {vT3}")
    k(f"v_lshl_add_u32 {vOffA[0]}, {vT0}, 10, {vT3}")
    k(f"v_xor_b32 {vOffA[1]}, 64, {vOffA[0]}")
    k(f"v_and_b32 {vT1}, 15, {vLane}")
    k(f"v_lshlrev_b32 {vT3}, 2, {vT2}")
    k(f"v_xor_b32 {vT3}, {vT1}, {vT3}")
    k(f"v_lshlrev_b32 {vT3}, 4, {vT3}")
    k(f"s_movk_i32 {sT}, 3072")
    k(f"v_mul_lo_u32 {vT1}, {vT2}, {sT}")
    k(f"v_add_u32 {vOffB}, {vT1}, {vT3}")
    k(f"v_and_b32 {vT0}, 31, {vLane}")
    k(f"v_lshrrev_b32 {vT1}, 5, {vLane}")
    k(f"v_lshrrev_b32 {vT2}, 1, {vT0}")
    k(f"v_and_b32 {vT2}, 7, {vT2}")
    k(f"s_lshl_b32 {sT}, {sWr}, 13")
    k(f"v_lshlrev_b32 {vT3}, 7, {vT0}")
    k(f"v_add_u32 {vT3}, {sT}, {vT3}")
    for kk in range(4):
        k(f"v_or_b32 {vSt}, {2 * kk}, {vT1}")
        k(f"v_xor_b32 {vSt}, {vSt}, {vT2}")
        k(f"v_lshl_add_u32 {vXa[kk]}, {vSt}, 4, {vT3}")
    k(f"v_lshrrev_b32 {vT0}, 4, {vLane}")
    k(f"v_and_b32 {vT1}, 15, {vLane}")
    k(f"v_lshrrev_b32 {vT2}, 2, {vT1}")
    k(f"v_and_b32 {vT1}, 3, {vT1}")
    k(f"v_lshrrev_b32 {vT3}, 1, {vT0}")
    k(f"v_lshl_add_u32 {vT3}, {vT3}, 3, {vT2}")
    k(f"v_lshlrev_b32 {vT3}, 8, {vT3}")
    k(f"v_add_u32 {vT3}, 16384, {vT3}")
    k(f"v_and_b32 {vSt}, 1, {vT1}")
    k(f"v_lshl_add_u32 {vT3}, {vSt}, 3, {vT3}")
    k(f"v_and_b32 {vT0}, 1, {vT0}")
    k(f"v_lshrrev_b32 {vT1}, 1, {vT1}")
    k(f"v_lshl_add_u32 {vT0}, {vT0}, 1, {vT1}")
    k(f"s_lshl_b32 {sT}, {sWc}, 3")
    k(f"v_add_u32 {vT0}, {sT}, {vT0}")
    k(f"v_lshlrev_b32 {vT2}, 2, {vT2}")
    for ct in range(2):
        k(f"v_add_u32 {vSt}, {4 * ct}, {vT0}")
        k(f"v_xor_b32 {vSt}, {vSt}, {vT2}")
        k(f"v_lshl_add_u32 {vWa[ct]}, {vSt}, 4, {vT3}")
    k("s_waitcnt lgkmcnt(0)")
    srd(k, srdX, sX, S * D * 2)
    srd(k, srdW, sW, D * 3 * D * 2)
    srd(k, srdWS, sWS, WS_END)
    k(f"s_lshl_b32 {sLdsW}, {sWv}, 12")
    k(f"s_lshl_b32 {sT}, {sMt}, 7")
    k(f"s_lshl_b32 {sT2}, {sWv}, 5")
    k(f"s_add_u32 {sT}, {sT}, {sT2}")
    k(f"s_lshl_b32 {sGA}, {sT}, 10")
    k(f"s_mul_i32 {sGB}, {sWv}, {16 * 3072}")
    k(f"s_lshl_b32 {sT}, {sNt}, 8")
    k(f"s_add_u32 {sGB}, {sGB}, {sT}")

    acc = [[k.v(16, 2) for _ in range(2)] for _ in range(2)]
    xf = [[k.v(4, 2) for _ in range(2)] for _ in range(2)]
    wf = [[k.v(4, 2) for _ in range(2)] for _ in range(2)]

    def dma_stage(st):
        slot = (st % 4) * 32768
        kb = st * 64
        for jj in range(4):
            k(f"s_add_u32 m0, {sLdsW}, {slot + jj * 1024}")
            k(f"s_add_u32 {sT}, {sGA}, {jj * 8192 + kb * 2}")
            k(f"buffer_load_dwordx4 {vOffA[jj & 1]}, {srdX}, {sT} offen lds")
        for jj in range(4):
            k(f"s_add_u32 m0, {sLdsW}, {slot + 16384 + jj * 1024}")
            k(f"s_add_u32 {sT}, {sGB}, {(jj * 4 + kb) * 3072}")
            k(f"buffer_load_dwordx4 {vOffB}, {srdW}, {sT} offen lds")

    def reads(buf, kk):
        for rt in range(2):
            k(f"ds_read_b128 {xf[buf][rt]}, {vXc[kk]} offset:{rt * 4096}")
        for ct in range(2):
            k(f"ds_read_b64_tr_b16 {wf[buf][ct][0:2]}, {vWc[ct]} offset:{kk * 4096}")
            k(f"ds_read_b64_tr_b16 {wf[buf][ct][2:4]}, {vWc[ct]} offset:{kk * 4096 + 1024}")

    def body(transposed):
        for st in range(3):
            dma_stage(st)
        for st in range(8):
            k.wait(vm=8 * (min(st + 2, 7) - st))
            k("s_barrier")
            if st + 3 < 8:
                dma_stage(st + 3)
            slot = (st % 4) * 32768
            for kk in range(4):
                k(f"v_add_u32 {vXc[kk]}, {slot}, {vXa[kk]}")
            for ct in range(2):
                k(f"v_add_u32 {vWc[ct]}, {slot}, {vWa[ct]}")
            reads(0, 0)
            for kk in range(4):
                if kk < 3:
                    reads((kk + 1) & 1, kk + 1)
                b = kk & 1
                for rt in range(2):
                    for ct in range(2):
                        c = "0" if (st == 0 and kk == 0) else str(acc[rt][ct])
                        if transposed:
                            k(f"v_mfma_f32_32x32x16_bf16 {acc[rt][ct]}, {wf[b][ct]}, {xf[b][rt]}, {c}")
                        else:
                            k(f"v_mfma_f32_32x32x16_bf16 {acc[rt][ct]}, {xf[b][rt]}, {wf[b][ct]}, {c}")

    def pack(a, dst, scale=None):
        if scale is not None:
            for r in range(16):
                k(f"v_mul_f32 {a[r]}, {scale}, {a[r]}")
        for j in range(8):
            k(f"v_cvt_pk_bf16_f32 {dst[j]}, {a[2 * j]}, {a[2 * j + 1]}")

    pk = k.v(8, 2)
    k(f"s_cmp_ge_u32 {sNt}, 8")
    k("s_cbranch_scc1 L_gemm_v")
    body(True)
    k(f"v_and_b32 {vT0}, 31, {vLane}")
    k(f"v_lshrrev_b32 {vT1}, 5, {vLane}")
    k(f"s_lshl_b32 {sT}, {sWr}, 6")
    k(f"v_add_u32 {vT0}, {sT}, {vT0}")
    k(f"v_lshlrev_b32 {vT0}, 4, {vT0}")
    k(f"v_lshl_add_u32 {vSt}, {vT1}, 15, {vT0}")
    k(f"s_and_b32 {sT}, {sNt}, 3")
    k(f"s_lshl_b32 {sT}, {sT}, 1")
    k(f"s_add_u32 {sT}, {sT}, {sWc}")
    k(f"s_lshl_b32 {sOut}, {sT}, 18")
    k(f"s_lshl_b32 {sT}, {sMt}, 11")
    k(f"s_add_u32 {sOut}, {sOut}, {sT}")
    k(f"s_lshr_b32 {sT}, {sNt}, 2")
    k(f"s_lshl_b32 {sT}, {sT}, 21")
    k(f"s_add_u32 {sOut}, {sOut}, {sT}")
    k(f"s_mov_b32 {sSec}, {f32hex(QSCALE)}")
    k(f"s_cmp_lt_u32 {sNt}, 4")
    k(f"s_cselect_b32 {sSec}, {sSec}, 1.0")
    for rt in range(2):
        for ct in range(2):
            pack(acc[rt][ct], pk, scale=sSec)
            for half in range(2):
                k(f"s_add_u32 {sT}, {sOut}, {(2 * ct + half) * 65536}")
                k(f"buffer_store_dwordx4 {pk[4 * half:4 * half + 4]}, {vSt}, {srdWS}, {sT} offen offset:{rt * 512}")
    k("s_endpgm")
    k.label("L_gemm_v")
    body(False)
    k(f"v_and_b32 {vT0}, 15, {vLane}")
    k(f"v_lshlrev_b32 {vT0}, 5, {vT0}")
    k(f"v_lshrrev_b32 {vT1}, 5, {vLane}")
    k(f"v_lshl_add_u32 {vT0}, {vT1}, 4, {vT0}")
    k(f"v_bfe_u32 {vT1}, {vLane}, 4, 1")
    k(f"v_lshl_add_u32 {vSt}, {vT1}, 16, {vT0}")
    k(f"s_and_b32 {sT}, {sNt}, 3")
    k(f"s_lshl_b32 {sT}, {sT}, 1")
    k(f"s_add_u32 {sT}, {sT}, {sWc}")
    k(f"s_lshl_b32 {sOut}, {sT}, 18")
    k(f"s_lshl_b32 {sT}, {sMt}, 3")
    k(f"s_lshl_b32 {sT2}, {sWr}, 2")
    k(f"s_add_u32 {sT}, {sT}, {sT2}")
    k(f"s_lshl_b32 {sT}, {sT}, 9")
    k(f"s_add_u32 {sOut}, {sOut}, {sT}")
    k(f"s_add_u32 {sOut}, {sOut}, {WS_VT}")
    for rt in range(2):
        for ct in range(2):
            pack(acc[rt][ct], pk)
            k(f"s_add_u32 {sT}, {sOut}, {2 * ct * 65536}")
            for half in range(2):
                k(f"buffer_store_dwordx4 {pk[4 * half:4 * half + 4]}, {vSt}, {srdWS}, {sT} offen offset:{rt * 1024 + half * 512}")
    k("s_endpgm")


def prep_role(k):
    sK, sV, sQ, sSh, sGw, sWS = (R("s", 4 + 2 * i, 2) for i in range(6))
    srdK, srdV, srdQ, srdSh, srdGw, srdWS = (R("s", 16 + 4 * i, 4) for i in range(6))
    sWv, sS0, sR0, sT, sT2 = (R("s", i) for i in range(40, 45))
    for r, key in ((sK, "k"), (sV, "v"), (sQ, "q"), (sSh, "shift"), (sGw, "gatew"), (sWS, "ws")):
        k(f"s_load_dwordx2 {r}, s[0:1], {KA[key]}")
    k.v.cur = 1
    vLane, vL16, vT0, vT1 = (k.v() for _ in range(4))
    k(f"v_and_b32 {vLane}, 63, v0")
    k(f"v_lshrrev_b32 {vT0}, 6, v0")
    k(f"v_readfirstlane_b32 {sWv}, {vT0}")
    k(f"v_lshlrev_b32 {vL16}, 4, {vLane}")
    k(f"s_sub_u32 {sS0}, s2, 192")
    k(f"s_lshl_b32 {sS0}, {sS0}, 5")
    k(f"s_lshl_b32 {sT}, {sWv}, 3")
    k(f"s_add_u32 {sR0}, {sS0}, {sT}")
    k("s_waitcnt lgkmcnt(0)")
    srd(k, srdK, sK, S * D * 2)
    srd(k, srdV, sV, S * D * 2)
    srd(k, srdQ, sQ, S * D * 2)
    srd(k, srdSh, sSh, D * 4 * 2)
    srd(k, srdGw, sGw, D * 2)
    srd(k, srdWS, sWS, WS_END)
    kraw = [k.v(4, 2) for _ in range(11)]
    vraw = [k.v(4, 2) for _ in range(8)]
    shraw = [k.v(4, 2) for _ in range(4)]
    k(f"s_sub_u32 {sT}, {sR0}, 3")
    k(f"s_lshl_b32 {sT}, {sT}, 10")
    for j in range(11):
        k(f"s_add_u32 {sT2}, {sT}, {j * 1024}")
        k(f"buffer_load_dwordx4 {kraw[j]}, {vL16}, {srdK}, {sT2} offen")
    k(f"v_lshlrev_b32 {vT0}, 6, {vLane}")
    for j in range(4):
        k(f"buffer_load_dwordx4 {shraw[j]}, {vT0}, {srdSh}, 0 offen offset:{j * 16}")
    k(f"s_lshl_b32 {sT}, {sR0}, 10")
    for j in range(8):
        k(f"s_add_u32 {sT2}, {sT}, {j * 1024}")
        k(f"buffer_load_dwordx4 {vraw[j]}, {vL16}, {srdV}, {sT2} offen")
    tap = [[k.v() for _ in range(8)] for _ in range(4)]
    for j in range(8):
        d0, d1 = shraw[j // 2][2 * (j & 1)], shraw[j // 2][2 * (j & 1) + 1]
        k(f"v_lshlrev_b32 {tap[0][j]}, 16, {d0}")
        k(f"v_and_b32 {tap[1][j]}, 0xffff0000, {d0}")
        k(f"v_lshlrev_b32 {tap[2][j]}, 16, {d1}")
        k(f"v_and_b32 {tap[3][j]}, 0xffff0000, {d1}")
    win = [[k.v() for _ in range(8)] for _ in range(4)]
    vf = [k.v() for _ in range(8)]
    e = [k.v() for _ in range(6)]
    kvp = k.v(4, 2)

    def unpack_row(dst, raw):
        for p in range(4):
            k(f"v_lshlrev_b32 {dst[2 * p]}, 16, {raw[p]}")
            k(f"v_and_b32 {dst[2 * p + 1]}, 0xffff0000, {raw[p]}")

    def rnd(a, b, tmp):
        k(f"v_cvt_pk_bf16_f32 {tmp}, {a}, {b}")
        k(f"v_lshlrev_b32 {a}, 16, {tmp}")
        k(f"v_and_b32 {b}, 0xffff0000, {tmp}")

    for j in range(3):
        unpack_row(win[j & 3], kraw[j])
    for row in range(8):
        unpack_row(win[(row + 3) & 3], kraw[row + 3])
        unpack_row(vf, vraw[row])
        for p in range(4):
            c0, c1 = 2 * p, 2 * p + 1
            for t in range(4):
                kr = win[(row + t) & 3]
                w = tap[3 - t]
                dst = (e[0], e[1]) if t == 0 else (e[2], e[3])
                k(f"v_mul_f32 {dst[0]}, {kr[c0]}, {w[c0]}")
                k(f"v_mul_f32 {dst[1]}, {kr[c1]}, {w[c1]}")
                rnd(dst[0], dst[1], e[4])
                if t > 0:
                    k(f"v_add_f32 {e[0]}, {e[0]}, {e[2]}")
                    k(f"v_add_f32 {e[1]}, {e[1]}, {e[3]}")
                    rnd(e[0], e[1], e[4])
            k(f"v_mul_f32 {e[0]}, {e[0]}, {vf[c0]}")
            k(f"v_mul_f32 {e[1]}, {e[1]}, {vf[c1]}")
            k(f"v_cvt_pk_bf16_f32 {kvp[p]}, {e[0]}, {e[1]}")
        k(f"s_lshl_b32 {sT}, {sWv}, 13")
        k(f"v_add_u32 {vT0}, {sT}, {vL16}")
        k(f"ds_write_b128 {vT0}, {kvp} offset:{row * 1024}")
    qraw = vraw
    k(f"s_lshl_b32 {sT}, {sR0}, 10")
    for j in range(8):
        k(f"s_add_u32 {sT2}, {sT}, {j * 1024}")
        k(f"buffer_load_dwordx4 {qraw[j]}, {vL16}, {srdQ}, {sT2} offen")
    gw = kraw[0]
    k(f"buffer_load_dwordx4 {gw}, {vL16}, {srdGw}, 0 offen")
    gwf = win[0]
    unpack_row(gwf, gw)
    acc = [k.v() for _ in range(8)]
    for row in range(8):
        unpack_row(vf, qraw[row])
        for p in range(4):
            k(f"v_mul_f32 {e[0]}, {vf[2 * p]}, {gwf[2 * p]}")
            k(f"v_mul_f32 {e[1]}, {vf[2 * p + 1]}, {gwf[2 * p + 1]}")
            rnd(e[0], e[1], e[4])
            if p == 0:
                k(f"v_add_f32 {acc[row]}, {e[0]}, {e[1]}")
            else:
                k(f"v_add_f32 {acc[row]}, {acc[row]}, {e[0]}")
                k(f"v_add_f32 {acc[row]}, {acc[row]}, {e[1]}")
    for sh in ("row_shr:1", "row_shr:2", "row_shr:4", "row_shr:8"):
        for row in range(8):
            k(f"v_add_f32_dpp {acc[row]}, {acc[row]}, {acc[row]} {sh} row_mask:0xf bank_mask:0xf bound_ctrl:0")
    for row in range(8):
        k(f"v_add_f32_dpp {acc[row]}, {acc[row]}, {acc[row]} row_bcast:15 row_mask:0xa bank_mask:0xf")
    for row in range(8):
        k(f"v_add_f32_dpp {acc[row]}, {acc[row]}, {acc[row]} row_bcast:31 row_mask:0xc bank_mask:0xf")
    k(f"s_mov_b32 {sT}, 0xbfb8aa3b")
    for row in range(8):
        a = acc[row]
        k(f"v_cvt_pk_bf16_f32 {a}, {a}, {a}")
        k(f"v_lshlrev_b32 {a}, 16, {a}")
        k(f"v_mul_f32 {a}, {sT}, {a}")
        k(f"v_exp_f32 {a}, {a}")
        k(f"v_add_f32 {a}, 1.0, {a}")
        k(f"v_rcp_f32 {a}, {a}")
        k(f"v_cvt_pk_bf16_f32 {a}, {a}, {a}")
        k(f"v_lshlrev_b32 {a}, 16, {a}")
    k(f"s_lshl_b32 {sT}, {sR0}, 2")
    k(f"s_add_u32 {sT}, {sT}, {WS_G}")
    k(f"v_mov_b32 {vT0}, 0")
    k(f"s_mov_b32 {sT2}, 0x80000000")
    k(f"s_mov_b32 exec_lo, 0")
    k(f"s_mov_b32 exec_hi, {sT2}")
    for row in range(8):
        k(f"buffer_store_dword {acc[row]}, {vT0}, {srdWS}, {sT} offen offset:{row * 4}")
    k("s_mov_b64 exec, -1")
    k.wait(lgkm=0)
    k("s_barrier")
    k(f"v_and_b32 {vT0}, 15, {vLane}")
    k(f"v_lshrrev_b32 {vT1}, 2, {vT0}")
    k(f"v_and_b32 {vT0}, 3, {vT0}")
    k(f"v_lshlrev_b32 {vT0}, 3, {vT0}")
    k(f"v_lshl_add_u32 {vT0}, {vT1}, 10, {vT0}")
    k(f"v_lshrrev_b32 {vT1}, 4, {vLane}")
    k(f"v_lshl_add_u32 {vT0}, {vT1}, 5, {vT0}")
    k(f"s_lshl_b32 {sT}, {sWv}, 8")
    k(f"v_add_u32 {vT0}, {sT}, {vT0}")
    k(f"v_lshlrev_b32 {vT1}, 12, {vLane}")
    k(f"s_lshl_b32 {sT}, {sWv}, 19")
    k(f"s_lshl_b32 {sT2}, {sS0}, 1")
    k(f"s_add_u32 {sT}, {sT}, {sT2}")
    k(f"s_add_u32 {sT}, {sT}, {WS_KVT}")
    tr = [k.v(4, 2) for _ in range(2)]
    for cg in range(2):
        for j in range(4):
            t = tr[(cg * 4 + j) & 1]
            k(f"ds_read_b64_tr_b16 {t[0:2]}, {vT0} offset:{cg * 128 + j * 8192}")
            k(f"ds_read_b64_tr_b16 {t[2:4]}, {vT0} offset:{cg * 128 + j * 8192 + 4096}")
            k(f"s_add_u32 {sT2}, {sT}, {cg * 64 * 4096 + j * 16}")
            k(f"buffer_store_dwordx4 {t}, {vT1}, {srdWS}, {sT2} offen")
    k("s_endpgm")
```

```python
from asmlib import Kern, R
from common import *
from k1 import srd


import os
MODE = os.environ.get("ATTN_MODE", "")


def build():
    k = Kern("attn_kernel")
    k("s_cmp_ge_u32 s2, 256")
    k("s_cbranch_scc1 L_a_exit")
    sWS = R("s", 4, 2)
    srdWS = R("s", 8, 4)
    sWv, sH, sQb, sT, sT2, sHead = (R("s", i) for i in range(12, 18))
    sMask = R("s", 20, 2)
    k(f"s_load_dwordx2 {sWS}, s[0:1], {KA['ws']}")
    k.v.cur = 1
    vLane, vT0, vT1, vT2 = (k.v() for _ in range(4))
    vL16 = k.v()
    vKa = k.v()
    vVa = k.v()
    vM = k.v()
    k(f"v_and_b32 {vLane}, 63, v0")
    k(f"v_lshrrev_b32 {vT0}, 6, v0")
    k(f"v_readfirstlane_b32 {sWv}, {vT0}")
    k(f"s_and_b32 {sH}, s2, 31")
    k(f"s_lshr_b32 {sQb}, s2, 5")
    k(f"v_lshlrev_b32 {vL16}, 4, {vLane}")
    k(f"v_and_b32 {vT0}, 31, {vLane}")
    k(f"v_lshrrev_b32 {vT1}, 5, {vLane}")
    k(f"v_lshlrev_b32 {vT2}, 4, {vT0}")
    k(f"v_lshl_add_u32 {vKa}, {vT1}, 15, {vT2}")
    k(f"v_lshlrev_b32 {vT2}, 5, {vT0}")
    k(f"v_lshl_add_u32 {vT2}, {vT1}, 4, {vT2}")
    k(f"v_add_u32 {vVa}, 65536, {vT2}")
    k(f"s_mov_b32 {sMask[0]}, 0x0000ffff")
    k(f"s_mov_b32 {sMask[1]}, 0x0000ffff")
    k("s_waitcnt lgkmcnt(0)")
    srd(k, srdWS, sWS, WS_END)
    k(f"s_lshl_b32 {sHead}, {sH}, 16")
    k(f"s_lshl_b32 {sT2}, {sWv}, 13")
    for reg, wsbase in ((0, WS_K), (65536, WS_VT)):
        for hf in range(2):
            k(f"s_add_u32 m0, {sT2}, {reg + hf * 4096}")
            k(f"s_add_u32 {sT}, {sHead}, {sT2}")
            k(f"s_add_u32 {sT}, {sT}, {wsbase + hf * 4096}")
            for j in range(4):
                k(f"buffer_load_dwordx4 {vL16}, {srdWS}, {sT} offen offset:{j * 1024} lds")
        if reg == 0:
            qf = k.v(4, 2)
            k(f"s_lshl_b32 {sT}, {sQb}, 8")
            k(f"s_lshl_b32 {sT2}, {sWv}, 5")
            k(f"s_add_u32 {sT}, {sT}, {sT2}")
            k(f"s_lshl_b32 {sQb}, {sT}, 0")
            k(f"s_lshl_b32 {sT}, {sT}, 4")
            k(f"s_add_u32 {sT}, {sT}, {sHead}")
            k(f"buffer_load_dwordx4 {qf}, {vKa}, {srdWS}, {sT} offen")
            k(f"s_lshl_b32 {sT2}, {sWv}, 13")
    kf = [k.v(4, 2) for _ in range(3)]
    Sx = [k.v(16, 2) for _ in range(2)]
    Cb = k.v(16, 2)
    P = [k.v(8, 2) for _ in range(2)]
    Vf = [[k.v(4, 2) for _ in range(2)] for _ in range(2)]
    O = k.v(16, 2)
    k(f"v_and_b32 {vT0}, 31, {vLane}")
    k(f"v_and_b32 {vT1}, 27, {vT0}")
    k(f"v_mov_b32 {vT2}, 0x3f803f80")
    k(f"v_cmp_eq_u32 vcc, 16, {vT1}")
    k(f"v_cndmask_b32 {vT2}, 0, {vT2}, vcc")
    for b in range(2):
        for hh in range(2):
            for r in range(4):
                k(f"v_mov_b32 {Vf[b][hh][r]}, {vT2}")
    k(f"v_mov_b32 {vM}, 0xff800000")
    k.wait(vm=8)
    k("s_barrier")

    def kread(t):
        k(f"ds_read_b128 {kf[t % 3]}, {vKa} offset:{t * 512}")

    kread(0); kread(1)
    for t in range(0 if MODE in ('p2', 'pro') else 65):
        if t + 2 < 64:
            kread(t + 2)
        if t < 64:
            k(f"v_mfma_f32_32x32x16_bf16 {Sx[t & 1]}, {kf[t % 3]}, {qf}, 0")
        if t >= 1:
            s = Sx[(t - 1) & 1]
            for j in range(8):
                k(f"v_max3_f32 {vM}, {vM}, {s[2 * j]}, {s[2 * j + 1]}")
    k(f"v_mov_b32 {vT0}, {vM}")
    k(f"v_permlane32_swap_b32 {vM}, {vT0}")
    k(f"v_max_f32 {vM}, {vM}, {vT0}")
    for r in range(16):
        k(f"v_sub_f32 {Cb[r]}, 0, {vM}")
    k.wait(vm=0)
    k("s_barrier")

    def vread(t):
        k(f"s_mov_b64 exec, {sMask}")
        for hh in range(2):
            k(f"ds_read_b128 {Vf[t & 1][hh]}, {vVa} offset:{(2 * t + hh) * 512}")
        k("s_mov_b64 exec, -1")

    def pv(t, hh):
        c = "0" if (t == 0 and hh == 0) else str(O)
        k(f"v_mfma_f32_32x32x16_bf16 {O}, {Vf[t & 1][hh]}, {P[t & 1][4 * hh:4 * hh + 4]}, {c}")

    kread(0); kread(1)
    k(f"v_mfma_f32_32x32x16_bf16 {Sx[0]}, {kf[0]}, {qf}, {Cb}")
    for t in range(0 if MODE in ('p1', 'pro') else 65):
        s = Sx[t & 1]
        p = P[t & 1]
        if t + 2 < 64:
            kread(t + 2)
        if t + 1 < 64:
            k(f"v_mfma_f32_32x32x16_bf16 {Sx[(t + 1) & 1]}, {kf[(t + 1) % 3]}, {qf}, {Cb}")
        if t < 64:
            vread(t)
            for r in range(8):
                k(f"v_exp_f32 {s[r]}, {s[r]}")
        if t >= 1:
            pv(t - 1, 0)
        if t < 64:
            for r in range(8, 16):
                k(f"v_exp_f32 {s[r]}, {s[r]}")
        if t >= 1:
            pv(t - 1, 1)
        if t < 64:
            for j in range(8):
                k(f"v_cvt_pk_bf16_f32 {p[j]}, {s[2 * j]}, {s[2 * j + 1]}")
    k(f"v_rcp_f32 {vT0}, {O[8]}")
    for r in range(8):
        k(f"v_mul_f32 {O[r]}, {O[r]}, {vT0}")
    for j in range(4):
        k(f"v_cvt_pk_bf16_f32 {P[0][j]}, {O[2 * j]}, {O[2 * j + 1]}")
    k(f"v_and_b32 {vT0}, 31, {vLane}")
    k(f"v_lshrrev_b32 {vT1}, 5, {vLane}")
    k(f"v_lshlrev_b32 {vT0}, 10, {vT0}")
    k(f"v_lshl_add_u32 {vT0}, {vT1}, 3, {vT0}")
    k(f"s_lshl_b32 {sT}, {sQb}, 10")
    k(f"s_lshl_b32 {sT2}, {sH}, 5")
    k(f"s_add_u32 {sT}, {sT}, {sT2}")
    k(f"s_add_u32 {sT}, {sT}, {WS_O}")
    k(f"buffer_store_dwordx2 {P[0][0:2]}, {vT0}, {srdWS}, {sT} offen")
    k(f"buffer_store_dwordx2 {P[0][2:4]}, {vT0}, {srdWS}, {sT} offen offset:16")
    k.label("L_a_exit")
    k("s_endpgm")
    return k
```

```python
from asmlib import Kern, R
from common import *
from k1 import srd

WAVES = 2
GRID, BLOCK = (256, 1, 1), (64 * WAVES, 1, 1)
XZ = 0
TE = 9216
TO = TE + 4224 + 64
WSZ = 17920
LDS = WSZ * WAVES


def build():
    k = Kern("conv_kernel")
    k("s_cmp_ge_u32 s2, 256")
    k("s_cbranch_scc1 L_c_exit")
    sWS, sH, sD = R("s", 4, 2), R("s", 6, 2), R("s", 8, 2)
    srdWS, srdH, srdD = R("s", 12, 4), R("s", 16, 4), R("s", 20, 4)
    sWv, sCh, sBase, sT, sT2 = (R("s", i) for i in range(24, 29))
    k(f"s_load_dwordx2 {sWS}, s[0:1], {KA['ws']}")
    k(f"s_load_dwordx2 {sH}, s[0:1], {KA['ssmk']}")
    k(f"s_load_dwordx2 {sD}, s[0:1], {KA['ssmd']}")
    k.v.cur = 1
    vLane, vL16, vT0, vT1, vT2, vXA, vB, vDs = (k.v() for _ in range(8))
    k(f"v_and_b32 {vLane}, 63, v0")
    k(f"v_lshrrev_b32 {vT0}, 6, v0")
    k(f"v_readfirstlane_b32 {sWv}, {vT0}")
    k(f"v_lshlrev_b32 {vL16}, 4, {vLane}")
    k(f"s_lshl_b32 {sCh}, s2, 1")
    k(f"s_add_u32 {sCh}, {sCh}, {sWv}")
    k(f"s_mul_i32 {sBase}, {sWv}, {WSZ}")
    k("s_waitcnt lgkmcnt(0)")
    srd(k, srdWS, sWS, WS_END)
    srd(k, srdH, sH, D * S * 2)
    srd(k, srdD, sD, D * 2)
    Dacc = [k.v(16, 2) for _ in range(2)]
    xr = [k.v(4, 2) for _ in range(4)]
    hr = [k.v(4, 2) for _ in range(4)]
    k(f"s_lshl_b32 {sT}, {sCh}, 12")
    for j in range(4):
        k(f"buffer_load_dwordx4 {hr[j]}, {vL16}, {srdH}, {sT} offen offset:{j * 1024}")
    k(f"s_add_u32 {sT2}, {sT}, {WS_KVT}")
    for j in range(4):
        k(f"buffer_load_dwordx4 {xr[j]}, {vL16}, {srdWS}, {sT2} offen offset:{j * 1024}")
    k(f"s_lshl_b32 {sT}, {sCh}, 1")
    k(f"v_mov_b32 {vT0}, {sT}")
    k(f"buffer_load_ushort {vDs}, {vT0}, {srdD}, 0 offen")
    z4 = Dacc[0][0:4]
    for r in range(4):
        k(f"v_mov_b32 {z4[r]}, 0")
    k(f"v_add_u32 {vT0}, {sBase}, {vL16}")
    for j in range(5):
        k(f"ds_write_b128 {vT0}, {z4} offset:{XZ + j * 1024}")
    k(f"s_mov_b64 exec, 0xff")
    k(f"ds_write_b128 {vT0}, {z4} offset:{TE + 4096}")
    k("s_mov_b64 exec, -1")
    k(f"v_lshrrev_b32 {vT1}, 3, {vLane}")
    k(f"v_mul_u32_u24 {vT1}, 144, {vT1}")
    k(f"v_and_b32 {vT2}, 7, {vLane}")
    k(f"v_lshl_add_u32 {vT1}, {vT2}, 4, {vT1}")
    k(f"v_add_u32 {vT1}, {sBase}, {vT1}")
    for j in range(4):
        k(f"ds_write_b128 {vT1}, {xr[j]} offset:{XZ + (31 + 8 * j) * 144}")
    rv = xr[0]
    k(f"v_sub_u32 {vT1}, {sBase}, {vL16}")
    for j in range(4):
        for i in range(4):
            k(f"v_alignbit_b32 {rv[i]}, {hr[j][3 - i]}, {hr[j][3 - i]}, 16")
        k(f"ds_write_b128 {vT1}, {rv} offset:{TE + (255 - 64 * j) * 16}")
    ee = [xr[1], xr[2]]
    nx = [xr[3][0], xr[3][1]]
    for j in range(5):
        if j == 4:
            k("s_mov_b64 exec, 0xff")
        c = ee[j & 1]
        k(f"ds_read_b128 {c}, {vT0} offset:{TE + j * 1024}")
        k(f"ds_read_b32 {nx[j & 1]}, {vT0} offset:{TE + j * 1024 + 16}")
        for i in range(3):
            k(f"v_alignbit_b32 {rv[i]}, {c[i + 1]}, {c[i]}, 16")
        k(f"v_alignbit_b32 {rv[3]}, {nx[j & 1]}, {c[3]}, 16")
        k(f"ds_write_b128 {vT0}, {rv} offset:{TO + j * 1024}")
    k("s_mov_b64 exec, -1")
    k(f"v_and_b32 {vT0}, 31, {vLane}")
    k(f"v_lshrrev_b32 {vT1}, 5, {vLane}")
    k(f"v_mul_u32_u24 {vXA}, 144, {vT0}")
    k(f"v_lshl_add_u32 {vXA}, {vT1}, 4, {vXA}")
    k(f"v_add_u32 {vXA}, {sBase}, {vXA}")
    k(f"v_and_b32 {vT2}, 1, {vT0}")
    k(f"v_mul_u32_u24 {vT2}, {TO - TE}, {vT2}")
    k(f"v_sub_u32 {vB}, {TO + 4092 - 64}, {vT2}")
    k(f"v_and_b32 {vT2}, 30, {vT0}")
    k(f"v_lshlrev_b32 {vT2}, 1, {vT2}")
    k(f"v_sub_u32 {vB}, {vB}, {vT2}")
    k(f"v_lshl_add_u32 {vB}, {vT1}, 4, {vB}")
    k(f"v_add_u32 {vB}, {sBase}, {vB}")
    k.wait(lgkm=0)

    NB = 10
    bfr = [k.v(4, 2) for _ in range(NB)]
    xa = [[k.v(4, 2) for _ in range(4)] for _ in range(2)]

    def bread(n, npos):
        o = (npos - n) * 8
        f = bfr[(n + 3) % NB]
        k(f"ds_read2_b32 {f[0:2]}, {vB} offset0:{o} offset1:{o + 1}")
        k(f"ds_read2_b32 {f[2:4]}, {vB} offset0:{o + 2} offset1:{o + 3}")

    def aread(m, kk):
        k(f"ds_read_b128 {xa[m & 1][kk]}, {vXA} offset:{XZ + (31 - m) * 144 + kk * 32}")

    for n in range(-3, 3):
        bread(n, 2)
    for kk in range(4):
        aread(0, kk)
    for m in range(32):
        if m + 1 < 32:
            k(f"v_subrev_u32 {vB}, 128, {vB}")
        for kk in range(4):
            if m + 1 < 32:
                aread(m + 1, kk)
                bread(4 * (m + 1) + 2 - kk, 4 * (m + 1) + 2)
            for nt in range(2):
                c = "0" if (m == 0 and kk == 0) else str(Dacc[nt])
                k(f"v_mfma_f32_32x32x16_bf16 {Dacc[nt]}, {xa[m & 1][kk]}, {bfr[(4 * m + 2 * nt - kk + 3) % NB]}, {c}")
    k(f"v_lshlrev_b32 {vDs}, 16, {vDs}")
    k(f"v_mul_u32_u24 {vXA}, {4 * 144}, {vT1}")
    k(f"v_lshl_add_u32 {vXA}, {vT0}, 1, {vXA}")
    k(f"v_add_u32 {vXA}, {sBase}, {vXA}")
    k(f"v_lshlrev_b32 {vB}, 9, {vT1}")
    k(f"v_lshl_add_u32 {vB}, {vT0}, 1, {vB}")
    k(f"s_lshl_b32 {sT}, {sCh}, 12")
    k(f"s_add_u32 {sT}, {sT}, {WS_ZT}")
    kvv = xa[0][0:4] + xa[1][0:4]
    e = [bfr[0][i] for i in range(4)]
    for nt in range(2):
        for r in range(16):
            ra = (r & 3) + 8 * (r >> 2)
            k(f"ds_read_u16 {R('v', xa[0][0].i + r)}, {vXA} offset:{XZ + (31 + ra) * 144 + nt * 64}")
        for r in range(0, 16, 2):
            kv0, kv1 = R("v", xa[0][0].i + r), R("v", xa[0][0].i + r + 1)
            k(f"v_lshlrev_b32 {kv0}, 16, {kv0}")
            k(f"v_lshlrev_b32 {kv1}, 16, {kv1}")
            k(f"v_mul_f32 {kv0}, {kv0}, {vDs}")
            k(f"v_mul_f32 {kv1}, {kv1}, {vDs}")
            k(f"v_cvt_pk_bf16_f32 {e[0]}, {kv0}, {kv1}")
            k(f"v_lshlrev_b32 {kv0}, 16, {e[0]}")
            k(f"v_and_b32 {kv1}, 0xffff0000, {e[0]}")
            k(f"v_cvt_pk_bf16_f32 {e[1]}, {Dacc[nt][r]}, {Dacc[nt][r + 1]}")
            k(f"v_lshlrev_b32 {e[2]}, 16, {e[1]}")
            k(f"v_and_b32 {e[3]}, 0xffff0000, {e[1]}")
            k(f"v_add_f32 {e[2]}, {e[2]}, {kv0}")
            k(f"v_add_f32 {e[3]}, {e[3]}, {kv1}")
            k(f"v_cvt_pk_bf16_f32 {e[0]}, {e[2]}, {e[3]}")
            ra0 = (r & 3) + 8 * (r >> 2)
            k(f"buffer_store_short {e[0]}, {vB}, {srdWS}, {sT} offen offset:{(ra0 * 64 + 32 * nt) * 2}")
            k(f"buffer_store_short_d16_hi {e[0]}, {vB}, {srdWS}, {sT} offen offset:{((ra0 + 1) * 64 + 32 * nt) * 2}")
    k.label("L_c_exit")
    k("s_endpgm")
    return k
```

```python
from asmlib import Kern, R
from common import *
from k1 import srd


def build():
    k = Kern("outp_kernel")
    k("s_cmp_ge_u32 s2, 256")
    k("s_cbranch_scc1 L_o_exit")
    sO, sW, sQ, sOut = R("s", 4, 2), R("s", 6, 2), R("s", 8, 2), R("s", 10, 2)
    srdWS, srdW, srdQ, srdOut = R("s", 12, 4), R("s", 16, 4), R("s", 20, 4), R("s", 24, 4)
    sMt, sNt, sWv, sT, sLdsW, sGA, sGB, sWr, sWc, sT2, sRow, sCol = (R("s", i) for i in range(28, 40))
    k(f"s_load_dwordx2 {sO}, s[0:1], {KA['ws']}")
    k(f"s_load_dwordx2 {sW}, s[0:1], {KA['wo']}")
    k(f"s_load_dwordx2 {sQ}, s[0:1], {KA['q']}")
    k(f"s_load_dwordx2 {sOut}, s[0:1], {KA['out']}")
    k.v.cur = 1
    vLane, vT0, vT1, vT2, vT3 = (k.v() for _ in range(5))
    vOffA = [k.v(), k.v()]
    vOffB = k.v()
    vXa = [k.v() for _ in range(4)]
    vWa = k.v()
    k(f"v_and_b32 {vLane}, 63, v0")
    k(f"v_lshrrev_b32 {vT0}, 6, v0")
    k(f"v_readfirstlane_b32 {sWv}, {vT0}")
    k(f"s_and_b32 {sT}, s2, 7")
    k(f"s_lshr_b32 {sT2}, s2, 3")
    k(f"s_lshr_b32 {sMt}, {sT2}, 3")
    k(f"s_lshl_b32 {sT}, {sT}, 2")
    k(f"s_add_u32 {sMt}, {sMt}, {sT}")
    k(f"s_and_b32 {sNt}, {sT2}, 7")
    k(f"s_lshr_b32 {sWr}, {sWv}, 1")
    k(f"s_and_b32 {sWc}, {sWv}, 1")
    k(f"v_lshrrev_b32 {vT0}, 3, {vLane}")
    k(f"v_and_b32 {vT1}, 7, {vLane}")
    k(f"v_lshrrev_b32 {vT2}, 4, {vLane}")
    k(f"v_xor_b32 {vT3}, {vT1}, {vT2}")
    k(f"v_lshlrev_b32 {vT3}, 4, {vT3}")
    k(f"v_lshl_add_u32 {vOffA[0]}, {vT0}, 10, {vT3}")
    k(f"v_xor_b32 {vOffA[1]}, 64, {vOffA[0]}")
    k(f"v_and_b32 {vT2}, 1, {vT2}")
    k(f"v_lshlrev_b32 {vT2}, 2, {vT2}")
    k(f"v_xor_b32 {vT3}, {vT1}, {vT2}")
    k(f"v_lshlrev_b32 {vT3}, 4, {vT3}")
    k(f"v_lshl_add_u32 {vOffB}, {vT0}, 10, {vT3}")
    k(f"v_and_b32 {vT0}, 31, {vLane}")
    k(f"v_lshrrev_b32 {vT1}, 5, {vLane}")
    k(f"v_lshrrev_b32 {vT2}, 1, {vT0}")
    k(f"v_and_b32 {vT2}, 7, {vT2}")
    k(f"s_lshl_b32 {sT}, {sWr}, 12")
    k(f"v_lshlrev_b32 {vT3}, 7, {vT0}")
    k(f"v_add_u32 {vT3}, {sT}, {vT3}")
    for kk in range(4):
        k(f"v_or_b32 {vWa}, {2 * kk}, {vT1}")
        k(f"v_xor_b32 {vWa}, {vWa}, {vT2}")
        k(f"v_lshl_add_u32 {vXa[kk]}, {vWa}, 4, {vT3}")
    k(f"v_lshrrev_b32 {vT0}, 4, {vLane}")
    k(f"v_and_b32 {vT1}, 15, {vLane}")
    k(f"v_lshrrev_b32 {vT2}, 2, {vT1}")
    k(f"v_and_b32 {vT1}, 3, {vT1}")
    k(f"v_lshrrev_b32 {vT3}, 1, {vT0}")
    k(f"v_lshl_add_u32 {vT3}, {vT3}, 3, {vT2}")
    k(f"v_lshlrev_b32 {vT3}, 7, {vT3}")
    k(f"v_add_u32 {vT3}, 8192, {vT3}")
    k(f"v_and_b32 {vWa}, 1, {vT1}")
    k(f"v_lshl_add_u32 {vT3}, {vWa}, 3, {vT3}")
    k(f"v_and_b32 {vT0}, 1, {vT0}")
    k(f"v_lshrrev_b32 {vT1}, 1, {vT1}")
    k(f"v_lshl_add_u32 {vT0}, {vT0}, 1, {vT1}")
    k(f"s_lshl_b32 {sT}, {sWc}, 2")
    k(f"v_add_u32 {vT0}, {sT}, {vT0}")
    k(f"v_lshrrev_b32 {vT2}, 1, {vT2}")
    k(f"v_lshlrev_b32 {vT2}, 2, {vT2}")
    k(f"v_xor_b32 {vT0}, {vT0}, {vT2}")
    k(f"v_lshl_add_u32 {vWa}, {vT0}, 4, {vT3}")
    k("s_waitcnt lgkmcnt(0)")
    srd(k, srdWS, sO, WS_END)
    srd(k, srdW, sW, D * D * 2)
    srd(k, srdQ, sQ, S * D * 2)
    srd(k, srdOut, sOut, S * D * 2)
    k(f"s_lshl_b32 {sLdsW}, {sWv}, 11")
    k(f"s_lshl_b32 {sT}, {sMt}, 6")
    k(f"s_lshl_b32 {sT2}, {sWv}, 4")
    k(f"s_add_u32 {sT}, {sT}, {sT2}")
    k(f"s_lshl_b32 {sGA}, {sT}, 10")
    k(f"s_add_u32 {sGA}, {sGA}, {WS_O}")
    k(f"s_lshl_b32 {sGB}, {sWv}, 14")
    k(f"s_lshl_b32 {sT}, {sNt}, 7")
    k(f"s_add_u32 {sGB}, {sGB}, {sT}")
    for st in range(8):
        for jj in range(2):
            k(f"s_add_u32 m0, {sLdsW}, {st * 16384 + jj * 1024}")
            k(f"s_add_u32 {sT}, {sGA}, {jj * 8192 + st * 128}")
            k(f"buffer_load_dwordx4 {vOffA[jj & 1]}, {srdWS}, {sT} offen lds")
        for jj in range(2):
            k(f"s_add_u32 m0, {sLdsW}, {st * 16384 + 8192 + jj * 1024}")
            k(f"s_add_u32 {sT}, {sGB}, {(jj * 8 + st * 64) * 1024}")
            k(f"buffer_load_dwordx4 {vOffB}, {srdW}, {sT} offen lds")
    acc = k.v(16, 2)
    xf = [k.v(4, 2) for _ in range(2)]
    wf = [k.v(4, 2) for _ in range(2)]

    def reads(i):
        st, kk = i // 4, i % 4
        b = i & 1
        if i == 16:
            for a in vXa + [vWa]:
                k(f"v_add_u32 {a}, 0x10000, {a}")
        so = (st % 4) * 16384
        k(f"ds_read_b128 {xf[b]}, {vXa[kk]} offset:{so}")
        k(f"ds_read_b64_tr_b16 {wf[b][0:2]}, {vWa} offset:{so + kk * 2048}")
        k(f"ds_read_b64_tr_b16 {wf[b][2:4]}, {vWa} offset:{so + kk * 2048 + 512}")

    k.wait(vm=28)
    k("s_barrier")
    reads(0)
    for i in range(32):
        if i + 1 < 32:
            if (i + 1) % 4 == 0:
                k.wait(vm=4 * (7 - (i + 1) // 4))
                k("s_barrier")
            reads(i + 1)
        c = "0" if i == 0 else str(acc)
        k(f"v_mfma_f32_32x32x16_bf16 {acc}, {wf[i & 1]}, {xf[i & 1]}, {c}")

    vS, vG, vOmg, vQo, vZo = (k.v() for _ in range(5))
    qv = [k.v(2, 2) for _ in range(4)]
    zv = k.v(16)
    k(f"v_and_b32 {vT0}, 31, {vLane}")
    k(f"v_lshrrev_b32 {vT1}, 5, {vLane}")
    k(f"s_lshl_b32 {sRow}, {sMt}, 6")
    k(f"s_lshl_b32 {sT}, {sWr}, 5")
    k(f"s_add_u32 {sRow}, {sRow}, {sT}")
    k(f"v_add_u32 {vS}, {sRow}, {vT0}")
    k(f"s_lshl_b32 {sCol}, {sNt}, 6")
    k(f"s_lshl_b32 {sT}, {sWc}, 5")
    k(f"s_add_u32 {sCol}, {sCol}, {sT}")
    k(f"v_lshlrev_b32 {vT2}, 2, {vS}")
    k(f"s_mov_b32 {sT}, {WS_G}")
    k(f"buffer_load_dword {vG}, {vT2}, {srdWS}, {sT} offen")
    k(f"v_lshlrev_b32 {vQo}, 10, {vS}")
    k(f"v_lshl_add_u32 {vQo}, {vT1}, 3, {vQo}")
    k(f"s_lshl_b32 {sT}, {sCol}, 1")
    k(f"v_add_u32 {vQo}, {sT}, {vQo}")
    for rg in range(4):
        k(f"buffer_load_dwordx2 {qv[rg]}, {vQo}, {srdQ}, 0 offen offset:{rg * 16}")
    k(f"v_lshlrev_b32 {vZo}, 1, {vS}")
    k(f"v_lshl_add_u32 {vZo}, {vT1}, 14, {vZo}")
    k(f"s_lshl_b32 {sT}, {sCol}, 12")
    k(f"s_add_u32 {sT}, {sT}, {WS_ZT}")
    for r in range(16):
        k(f"s_add_u32 {sT2}, {sT}, {((r & 3) + 8 * (r >> 2)) * 4096}")
        k(f"buffer_load_ushort {zv[r]}, {vZo}, {srdWS}, {sT2} offen")
    e = [k.v() for _ in range(8)]
    pk = k.v(2, 2)
    k(f"v_sub_f32 {vOmg}, 1.0, {vG}")
    k(f"v_cvt_pk_bf16_f32 {vOmg}, {vOmg}, {vOmg}")
    k(f"v_lshlrev_b32 {vOmg}, 16, {vOmg}")

    def unpack(lo, hi, src):
        k(f"v_lshlrev_b32 {lo}, 16, {src}")
        k(f"v_and_b32 {hi}, 0xffff0000, {src}")

    for rg in range(4):
        for pr in range(2):
            r0, r1 = 4 * rg + 2 * pr, 4 * rg + 2 * pr + 1
            unpack(e[0], e[1], qv[rg][pr])
            k(f"v_lshlrev_b32 {e[2]}, 16, {zv[r0]}")
            k(f"v_lshlrev_b32 {e[3]}, 16, {zv[r1]}")
            k(f"v_mul_f32 {e[0]}, {e[0]}, {e[2]}")
            k(f"v_mul_f32 {e[1]}, {e[1]}, {e[3]}")
            k(f"v_cvt_pk_bf16_f32 {e[4]}, {e[0]}, {e[1]}")
            unpack(e[0], e[1], e[4])
            k(f"v_mul_f32 {e[0]}, {vG}, {e[0]}")
            k(f"v_mul_f32 {e[1]}, {vG}, {e[1]}")
            k(f"v_cvt_pk_bf16_f32 {e[4]}, {e[0]}, {e[1]}")
            unpack(e[0], e[1], e[4])
            k(f"v_cvt_pk_bf16_f32 {e[5]}, {acc[r0]}, {acc[r1]}")
            unpack(e[2], e[3], e[5])
            k(f"v_mul_f32 {e[2]}, {vOmg}, {e[2]}")
            k(f"v_mul_f32 {e[3]}, {vOmg}, {e[3]}")
            k(f"v_cvt_pk_bf16_f32 {e[5]}, {e[2]}, {e[3]}")
            unpack(e[2], e[3], e[5])
            k(f"v_add_f32 {e[0]}, {e[0]}, {e[2]}")
            k(f"v_add_f32 {e[1]}, {e[1]}, {e[3]}")
            k(f"v_cvt_pk_bf16_f32 {pk[pr]}, {e[0]}, {e[1]}")
        k(f"buffer_store_dwordx2 {pk}, {vQo}, {srdOut}, 0 offen offset:{rg * 16}")
    k.label("L_o_exit")
    k("s_endpgm")
    return k
```

```python
import sys, os
sys.path.insert(0, os.path.dirname(__file__))
from asmlib import Kern, R
from common import *
import k1

HEADER = open(os.path.join(os.path.dirname(__file__), "..", "cdna_kernels",
              "gated_mix__ssm_conv_h3__softmax_full_mha__prompt.s.ref")).read().split("; Override launch geometry")[0]

kernels = []


def add(name, kern, grid, block, lds):
    kern.finalize()
    kernels.append((name, kern, grid, block, lds))


def build_k1(stages):
    k = Kern("proj_kernel")
    k("s_cmp_ge_u32 s2, 256")
    k("s_cbranch_scc1 L_p_exit")
    k("s_cmp_ge_u32 s2, 192")
    k("s_cbranch_scc1 L_prep")
    if os.environ.get("K1_MODE") == "prep":
        k("s_branch L_p_exit")
    k1.gemm_role(k)
    k.label("L_prep")
    if hasattr(k1, "prep_role") and "prep" in stages and os.environ.get("K1_MODE") != "gemm":
        k1.prep_role(k)
    k.label("L_p_exit")
    k("s_endpgm")
    return k


def main(stages, out):
    add("proj_kernel", build_k1(stages), (256, 1, 1), (512, 1, 1), 131072)
    try:
        import kattn
        if "attn" in stages:
            import kconv2
            add("attn_kernel", kattn.build(), (256, 1, 1), (768, 1, 1), kconv2.LDS_END)
    except ImportError:
        pass
    if "conv" in stages:
        import kconv
        add("conv_kernel", kconv.build(), kconv.GRID, kconv.BLOCK, kconv.LDS)
    if "out" in stages:
        import kout
        add("outp_kernel", kout.build(), (256, 1, 1), (256, 1, 1), 131072)
    txt = HEADER
    txt += "; Launch list (run order).\n"
    for name, kern, grid, block, lds in kernels:
        txt += f"; @launch kernel={name} grid=({grid[0]},{grid[1]},{grid[2]}) block=({block[0]},{block[1]},{block[2]}) lds={lds}\n"
    txt += '.amdgcn_target "amdgcn-amd-amdhsa--gfx950"\n.text\n'
    for name, kern, grid, block, lds in kernels:
        txt += f".globl {name}\n.p2align 8\n.type {name},@function\n{name}:\n"
        txt += kern.text()
    txt += '.section .rodata,"a"\n'
    for name, kern, grid, block, lds in kernels:
        nv = (kern.v.hi + 7) // 8 * 8
        txt += f""".p2align 6
.amdhsa_kernel {name}
  .amdhsa_next_free_vgpr {nv}
  .amdhsa_next_free_sgpr 96
  .amdhsa_accum_offset {min(256, (nv + 3) // 4 * 4)}
  .amdhsa_group_segment_fixed_size 0
  .amdhsa_kernarg_size 104
  .amdhsa_user_sgpr_count 2
  .amdhsa_user_sgpr_kernarg_segment_ptr 1
  .amdhsa_system_sgpr_workgroup_id_x 1
.end_amdhsa_kernel
"""
        print(name, "vgprs", kern.v.hi, kern.stats())
    open(out, "w").write(txt)
    print("bytes", len(txt))


if __name__ == "__main__":
    stages = sys.argv[1].split(",") if len(sys.argv) > 1 else ["prep", "attn", "conv", "out"]
    out = sys.argv[2] if len(sys.argv) > 2 else os.path.join(os.path.dirname(__file__), "..", "cdna_kernels",
                                                             "gated_mix__ssm_conv_h3__softmax_full_mha__prompt.s")
    main(stages, out)
```

```python
import struct
from asmlib import Kern, R
from common import *


def f32hex(x):
    return "0x%08x" % struct.unpack("<I", struct.pack("<f", x))[0]


def srd(k, sd, sp, nbytes):
    k(f"s_mov_b32 {sd[0]}, {sp[0]}")
    k(f"s_and_b32 {sd[1]}, {sp[1]}, 0xffff")
    k(f"s_mov_b32 {sd[2]}, {nbytes}")
    k(f"s_mov_b32 {sd[3]}, 0x00020000")


def gemm_role(k):
    sX, sW, sWS = R("s", 4, 2), R("s", 6, 2), R("s", 8, 2)
    srdX, srdW, srdWS = R("s", 12, 4), R("s", 16, 4), R("s", 20, 4)
    sMt, sNt, sWv, sT, sLdsW, sGA, sGB, sOut = (R("s", i) for i in range(24, 32))
    sWr, sWc, sT2, sSec = (R("s", i) for i in range(32, 36))
    k(f"s_load_dwordx2 {sX}, s[0:1], {KA['q']}")
    k(f"s_load_dwordx2 {sW}, s[0:1], {KA['wqkv']}")
    k(f"s_load_dwordx2 {sWS}, s[0:1], {KA['ws']}")
    k.v.cur = 1
    vLane = k.v()
    vT0, vT1, vT2, vT3 = (k.v() for _ in range(4))
    vOffA = [k.v(), k.v()]
    vOffB = k.v()
    vXa = [k.v() for _ in range(4)]
    vWa = k.v()
    vXc = [k.v() for _ in range(4)]
    vWc = k.v()
    vSt = k.v()
    k(f"v_and_b32 {vLane}, 63, v0")
    k(f"v_lshrrev_b32 {vT0}, 6, v0")
    k(f"v_readfirstlane_b32 {sWv}, {vT0}")
    k(f"s_and_b32 {sT}, s2, 7")
    k(f"s_lshr_b32 {sT2}, s2, 3")
    k(f"s_mul_i32 {sSec}, {sT2}, 43")
    k(f"s_lshr_b32 {sSec}, {sSec}, 8")
    k(f"s_mul_i32 {sNt}, {sSec}, 6")
    k(f"s_sub_u32 {sNt}, {sT2}, {sNt}")
    k(f"s_lshr_b32 {sMt}, {sT}, 1")
    k(f"s_lshl_b32 {sMt}, {sMt}, 2")
    k(f"s_add_u32 {sMt}, {sMt}, {sSec}")
    k(f"s_and_b32 {sT}, {sT}, 1")
    k(f"s_mul_i32 {sT}, {sT}, 6")
    k(f"s_add_u32 {sNt}, {sNt}, {sT}")
    k(f"s_lshr_b32 {sWr}, {sWv}, 2")
    k(f"s_and_b32 {sWc}, {sWv}, 3")
    k(f"v_lshrrev_b32 {vT0}, 3, {vLane}")
    k(f"v_and_b32 {vT1}, 7, {vLane}")
    k(f"v_lshrrev_b32 {vT2}, 4, {vLane}")
    k(f"v_xor_b32 {vT3}, {vT1}, {vT2}")
    k(f"v_lshlrev_b32 {vT3}, 4, {vT3}")
    k(f"v_lshl_add_u32 {vOffA[0]}, {vT0}, 10, {vT3}")
    k(f"v_xor_b32 {vOffA[1]}, 64, {vOffA[0]}")
    k(f"v_and_b32 {vT1}, 15, {vLane}")
    k(f"v_lshlrev_b32 {vT3}, 2, {vT2}")
    k(f"v_xor_b32 {vT3}, {vT1}, {vT3}")
    k(f"v_lshlrev_b32 {vT3}, 4, {vT3}")
    k(f"s_movk_i32 {sT}, 3072")
    k(f"v_mul_lo_u32 {vT1}, {vT2}, {sT}")
    k(f"v_add_u32 {vOffB}, {vT1}, {vT3}")
    k(f"v_and_b32 {vT0}, 31, {vLane}")
    k(f"v_lshrrev_b32 {vT1}, 5, {vLane}")
    k(f"v_lshrrev_b32 {vT2}, 1, {vT0}")
    k(f"v_and_b32 {vT2}, 7, {vT2}")
    k(f"s_lshl_b32 {sT}, {sWr}, 13")
    k(f"v_lshlrev_b32 {vT3}, 7, {vT0}")
    k(f"v_add_u32 {vT3}, {sT}, {vT3}")
    for kk in range(4):
        k(f"v_or_b32 {vSt}, {2 * kk}, {vT1}")
        k(f"v_xor_b32 {vSt}, {vSt}, {vT2}")
        k(f"v_lshl_add_u32 {vXa[kk]}, {vSt}, 4, {vT3}")
    k(f"v_lshrrev_b32 {vT0}, 4, {vLane}")
    k(f"v_and_b32 {vT1}, 15, {vLane}")
    k(f"v_lshrrev_b32 {vT2}, 2, {vT1}")
    k(f"v_and_b32 {vT1}, 3, {vT1}")
    k(f"v_lshrrev_b32 {vT3}, 1, {vT0}")
    k(f"v_lshl_add_u32 {vT3}, {vT3}, 3, {vT2}")
    k(f"v_lshlrev_b32 {vT3}, 8, {vT3}")
    k(f"v_add_u32 {vT3}, 16384, {vT3}")
    k(f"v_and_b32 {vSt}, 1, {vT1}")
    k(f"v_lshl_add_u32 {vT3}, {vSt}, 3, {vT3}")
    k(f"v_and_b32 {vT0}, 1, {vT0}")
    k(f"v_lshrrev_b32 {vT1}, 1, {vT1}")
    k(f"v_lshl_add_u32 {vT0}, {vT0}, 1, {vT1}")
    k(f"s_lshl_b32 {sT}, {sWc}, 2")
    k(f"v_add_u32 {vT0}, {sT}, {vT0}")
    k(f"v_lshlrev_b32 {vT2}, 2, {vT2}")
    k(f"v_xor_b32 {vSt}, {vT0}, {vT2}")
    k(f"v_lshl_add_u32 {vWa}, {vSt}, 4, {vT3}")
    k("s_waitcnt lgkmcnt(0)")
    srd(k, srdX, sX, S * D * 2)
    srd(k, srdW, sW, D * 3 * D * 2)
    srd(k, srdWS, sWS, WS_END)
    k(f"s_lshl_b32 {sLdsW}, {sWv}, 11")
    k(f"s_lshl_b32 {sT}, {sMt}, 7")
    k(f"s_lshl_b32 {sT2}, {sWv}, 4")
    k(f"s_add_u32 {sT}, {sT}, {sT2}")
    k(f"s_lshl_b32 {sGA}, {sT}, 10")
    k(f"s_mul_i32 {sGB}, {sWv}, {8 * 3072}")
    k(f"s_lshl_b32 {sT}, {sNt}, 8")
    k(f"s_add_u32 {sGB}, {sGB}, {sT}")

    acc = [k.v(16, 2) for _ in range(2)]
    xf = [[k.v(4, 2) for _ in range(2)] for _ in range(2)]
    wf = [k.v(4, 2) for _ in range(2)]

    def dma_stage(st):
        slot = (st % 4) * 32768
        kb = st * 64
        for jj in range(2):
            k(f"s_add_u32 m0, {sLdsW}, {slot + jj * 1024}")
            k(f"s_add_u32 {sT}, {sGA}, {jj * 8192 + kb * 2}")
            k(f"buffer_load_dwordx4 {vOffA[jj & 1]}, {srdX}, {sT} offen lds")
        for jj in range(2):
            k(f"s_add_u32 m0, {sLdsW}, {slot + 16384 + jj * 1024}")
            k(f"s_add_u32 {sT}, {sGB}, {(jj * 4 + kb) * 3072}")
            k(f"buffer_load_dwordx4 {vOffB}, {srdW}, {sT} offen lds")

    def setslot(st):
        slot = (st % 4) * 32768
        for kk in range(4):
            k(f"v_add_u32 {vXc[kk]}, {slot}, {vXa[kk]}")
        k(f"v_add_u32 {vWc}, {slot}, {vWa}")

    def reads(i):
        kk, b = i % 4, i & 1
        for rt in range(2):
            k(f"ds_read_b128 {xf[b][rt]}, {vXc[kk]} offset:{rt * 4096}")
        k(f"ds_read_b64_tr_b16 {wf[b][0:2]}, {vWc} offset:{kk * 4096}")
        k(f"ds_read_b64_tr_b16 {wf[b][2:4]}, {vWc} offset:{kk * 4096 + 1024}")

    def body(transposed):
        for st in range(3):
            dma_stage(st)
        k.wait(vm=8)
        k("s_barrier")
        dma_stage(3)
        setslot(0)
        reads(0)
        for i in range(32):
            if i + 1 < 32:
                if (i + 1) % 4 == 0:
                    st = (i + 1) // 4
                    k.wait(vm=4 * (min(st + 2, 7) - st), lgkm=0)
                    k("s_barrier")
                    if st + 3 < 8:
                        dma_stage(st + 3)
                    setslot(st)
                reads(i + 1)
            b = i & 1
            for rt in range(2):
                c = "0" if i == 0 else str(acc[rt])
                if transposed:
                    k(f"v_mfma_f32_32x32x16_bf16 {acc[rt]}, {wf[b]}, {xf[b][rt]}, {c}")
                else:
                    k(f"v_mfma_f32_32x32x16_bf16 {acc[rt]}, {xf[b][rt]}, {wf[b]}, {c}")

    def pack(a, dst, scale=None):
        if scale is not None:
            for r in range(16):
                k(f"v_mul_f32 {a[r]}, {scale}, {a[r]}")
        for j in range(8):
            k(f"v_cvt_pk_bf16_f32 {dst[j]}, {a[2 * j]}, {a[2 * j + 1]}")

    pk = [k.v(8, 2) for _ in range(2)]
    k(f"s_cmp_ge_u32 {sNt}, 8")
    k("s_cbranch_scc1 L_gemm_v")
    body(True)
    k(f"v_and_b32 {vT0}, 31, {vLane}")
    k(f"v_lshrrev_b32 {vT1}, 5, {vLane}")
    k(f"s_lshl_b32 {sT}, {sWr}, 6")
    k(f"v_add_u32 {vT0}, {sT}, {vT0}")
    k(f"v_lshlrev_b32 {vT0}, 4, {vT0}")
    k(f"v_lshl_add_u32 {vSt}, {vT1}, 15, {vT0}")
    k(f"s_and_b32 {sT}, {sNt}, 3")
    k(f"s_lshl_b32 {sT}, {sT}, 2")
    k(f"s_add_u32 {sT}, {sT}, {sWc}")
    k(f"s_lshl_b32 {sOut}, {sT}, 17")
    k(f"s_lshl_b32 {sT}, {sMt}, 11")
    k(f"s_add_u32 {sOut}, {sOut}, {sT}")
    k(f"s_lshr_b32 {sT}, {sNt}, 2")
    k(f"s_lshl_b32 {sT}, {sT}, 21")
    k(f"s_add_u32 {sOut}, {sOut}, {sT}")
    k(f"s_mov_b32 {sSec}, {f32hex(QSCALE)}")
    k(f"s_cmp_lt_u32 {sNt}, 4")
    k(f"s_cselect_b32 {sSec}, {sSec}, 1.0")
    for rt in range(2):
        pack(acc[rt], pk[rt], scale=sSec)
        for half in range(2):
            k(f"s_add_u32 {sT}, {sOut}, {half * 65536}")
            k(f"buffer_store_dwordx4 {pk[rt][4 * half:4 * half + 4]}, {vSt}, {srdWS}, {sT} offen offset:{rt * 512}")
    k("s_endpgm")
    k.label("L_gemm_v")
    body(False)
    k(f"v_and_b32 {vT0}, 15, {vLane}")
    k(f"v_lshlrev_b32 {vT0}, 5, {vT0}")
    k(f"v_lshrrev_b32 {vT1}, 5, {vLane}")
    k(f"v_lshl_add_u32 {vT0}, {vT1}, 4, {vT0}")
    k(f"v_bfe_u32 {vT1}, {vLane}, 4, 1")
    k(f"v_lshl_add_u32 {vSt}, {vT1}, 16, {vT0}")
    k(f"s_and_b32 {sT}, {sNt}, 3")
    k(f"s_lshl_b32 {sT}, {sT}, 2")
    k(f"s_add_u32 {sT}, {sT}, {sWc}")
    k(f"s_lshl_b32 {sOut}, {sT}, 17")
    k(f"s_lshl_b32 {sT}, {sMt}, 3")
    k(f"s_lshl_b32 {sT2}, {sWr}, 2")
    k(f"s_add_u32 {sT}, {sT}, {sT2}")
    k(f"s_lshl_b32 {sT}, {sT}, 9")
    k(f"s_add_u32 {sOut}, {sOut}, {sT}")
    k(f"s_add_u32 {sOut}, {sOut}, {WS_VT}")
    for rt in range(2):
        pack(acc[rt], pk[rt])
        for half in range(2):
            k(f"buffer_store_dwordx4 {pk[rt][4 * half:4 * half + 4]}, {vSt}, {srdWS}, {sOut} offen offset:{rt * 1024 + half * 512}")
    k("s_endpgm")


def prep_role(k):
    NR = 4
    sK, sV, sQ, sSh, sGw, sWS = (R("s", 4 + 2 * i, 2) for i in range(6))
    srdK, srdV, srdQ, srdSh, srdGw, srdWS = (R("s", 16 + 4 * i, 4) for i in range(6))
    sWv, sS0, sR0, sT, sT2 = (R("s", i) for i in range(40, 45))
    for r, key in ((sK, "k"), (sV, "v"), (sQ, "q"), (sSh, "shift"), (sGw, "gatew"), (sWS, "ws")):
        k(f"s_load_dwordx2 {r}, s[0:1], {KA[key]}")
    k.v.cur = 1
    vLane, vL16, vT0, vT1 = (k.v() for _ in range(4))
    k(f"v_and_b32 {vLane}, 63, v0")
    k(f"v_lshrrev_b32 {vT0}, 6, v0")
    k(f"v_readfirstlane_b32 {sWv}, {vT0}")
    k(f"v_lshlrev_b32 {vL16}, 4, {vLane}")
    k(f"s_sub_u32 {sS0}, s2, 192")
    k(f"s_lshl_b32 {sS0}, {sS0}, 5")
    k(f"s_lshl_b32 {sT}, {sWv}, 2")
    k(f"s_add_u32 {sR0}, {sS0}, {sT}")
    k("s_waitcnt lgkmcnt(0)")
    srd(k, srdK, sK, S * D * 2)
    srd(k, srdV, sV, S * D * 2)
    srd(k, srdQ, sQ, S * D * 2)
    srd(k, srdSh, sSh, D * 4 * 2)
    srd(k, srdGw, sGw, D * 2)
    srd(k, srdWS, sWS, WS_END)
    kraw = [k.v(4, 2) for _ in range(NR + 3)]
    vraw = [k.v(4, 2) for _ in range(NR)]
    qraw = [k.v(4, 2) for _ in range(NR)]
    shraw = [k.v(4, 2) for _ in range(4)]
    gw = k.v(4, 2)
    k(f"s_sub_u32 {sT}, {sR0}, 3")
    k(f"s_lshl_b32 {sT}, {sT}, 10")
    for j in range(NR + 3):
        k(f"s_add_u32 {sT2}, {sT}, {j * 1024}")
        k(f"buffer_load_dwordx4 {kraw[j]}, {vL16}, {srdK}, {sT2} offen")
    k(f"v_lshlrev_b32 {vT0}, 6, {vLane}")
    for j in range(4):
        k(f"buffer_load_dwordx4 {shraw[j]}, {vT0}, {srdSh}, 0 offen offset:{j * 16}")
    k(f"s_lshl_b32 {sT}, {sR0}, 10")
    for j in range(NR):
        k(f"s_add_u32 {sT2}, {sT}, {j * 1024}")
        k(f"buffer_load_dwordx4 {vraw[j]}, {vL16}, {srdV}, {sT2} offen")
    for j in range(NR):
        k(f"s_add_u32 {sT2}, {sT}, {j * 1024}")
        k(f"buffer_load_dwordx4 {qraw[j]}, {vL16}, {srdQ}, {sT2} offen")
    k(f"buffer_load_dwordx4 {gw}, {vL16}, {srdGw}, 0 offen")
    tap = [[k.v() for _ in range(8)] for _ in range(4)]
    for j in range(8):
        d0, d1 = shraw[j // 2][2 * (j & 1)], shraw[j // 2][2 * (j & 1) + 1]
        k(f"v_lshlrev_b32 {tap[0][j]}, 16, {d0}")
        k(f"v_and_b32 {tap[1][j]}, 0xffff0000, {d0}")
        k(f"v_lshlrev_b32 {tap[2][j]}, 16, {d1}")
        k(f"v_and_b32 {tap[3][j]}, 0xffff0000, {d1}")
    win = [[k.v() for _ in range(8)] for _ in range(4)]
    vf = [k.v() for _ in range(8)]
    e = [k.v() for _ in range(6)]
    kvp = k.v(4, 2)

    def unpack_row(dst, raw):
        for p in range(4):
            k(f"v_lshlrev_b32 {dst[2 * p]}, 16, {raw[p]}")
            k(f"v_and_b32 {dst[2 * p + 1]}, 0xffff0000, {raw[p]}")

    def rnd(a, b, tmp):
        k(f"v_cvt_pk_bf16_f32 {tmp}, {a}, {b}")
        k(f"v_lshlrev_b32 {a}, 16, {tmp}")
        k(f"v_and_b32 {b}, 0xffff0000, {tmp}")

    for j in range(3):
        unpack_row(win[j & 3], kraw[j])
    k(f"s_lshl_b32 {sT}, {sWv}, 12")
    k(f"v_add_u32 {vT1}, {sT}, {vL16}")
    for row in range(NR):
        unpack_row(win[(row + 3) & 3], kraw[row + 3])
        unpack_row(vf, vraw[row])
        for p in range(4):
            c0, c1 = 2 * p, 2 * p + 1
            for t in range(4):
                kr = win[(row + t) & 3]
                w = tap[3 - t]
                dst = (e[0], e[1]) if t == 0 else (e[2], e[3])
                k(f"v_mul_f32 {dst[0]}, {kr[c0]}, {w[c0]}")
                k(f"v_mul_f32 {dst[1]}, {kr[c1]}, {w[c1]}")
                rnd(dst[0], dst[1], e[4])
                if t > 0:
                    k(f"v_add_f32 {e[0]}, {e[0]}, {e[2]}")
                    k(f"v_add_f32 {e[1]}, {e[1]}, {e[3]}")
                    rnd(e[0], e[1], e[4])
            k(f"v_mul_f32 {e[0]}, {e[0]}, {vf[c0]}")
            k(f"v_mul_f32 {e[1]}, {e[1]}, {vf[c1]}")
            k(f"v_cvt_pk_bf16_f32 {kvp[p]}, {e[0]}, {e[1]}")
        k(f"ds_write_b128 {vT1}, {kvp} offset:{row * 1024}")
    gwf = win[0]
    unpack_row(gwf, gw)
    acc = [k.v() for _ in range(NR)]
    for row in range(NR):
        unpack_row(vf, qraw[row])
        for p in range(4):
            k(f"v_mul_f32 {e[0]}, {vf[2 * p]}, {gwf[2 * p]}")
            k(f"v_mul_f32 {e[1]}, {vf[2 * p + 1]}, {gwf[2 * p + 1]}")
            rnd(e[0], e[1], e[4])
            if p == 0:
                k(f"v_add_f32 {acc[row]}, {e[0]}, {e[1]}")
            else:
                k(f"v_add_f32 {acc[row]}, {acc[row]}, {e[0]}")
                k(f"v_add_f32 {acc[row]}, {acc[row]}, {e[1]}")
    for sh in ("row_shr:1", "row_shr:2", "row_shr:4", "row_shr:8"):
        for row in range(NR):
            k(f"v_add_f32_dpp {acc[row]}, {acc[row]}, {acc[row]} {sh} row_mask:0xf bank_mask:0xf bound_ctrl:0")
    for row in range(NR):
        k(f"v_add_f32_dpp {acc[row]}, {acc[row]}, {acc[row]} row_bcast:15 row_mask:0xa bank_mask:0xf")
    for row in range(NR):
        k(f"v_add_f32_dpp {acc[row]}, {acc[row]}, {acc[row]} row_bcast:31 row_mask:0xc bank_mask:0xf")
    k(f"s_mov_b32 {sT}, 0xbfb8aa3b")
    for row in range(NR):
        a = acc[row]
        k(f"v_cvt_pk_bf16_f32 {a}, {a}, {a}")
        k(f"v_lshlrev_b32 {a}, 16, {a}")
        k(f"v_mul_f32 {a}, {sT}, {a}")
        k(f"v_exp_f32 {a}, {a}")
        k(f"v_add_f32 {a}, 1.0, {a}")
        k(f"v_rcp_f32 {a}, {a}")
        k(f"v_cvt_pk_bf16_f32 {a}, {a}, {a}")
        k(f"v_lshlrev_b32 {a}, 16, {a}")
    k(f"s_lshl_b32 {sT}, {sR0}, 2")
    k(f"s_add_u32 {sT}, {sT}, {WS_G}")
    k(f"v_mov_b32 {vT0}, 0")
    k(f"s_mov_b32 {sT2}, 0x80000000")
    k(f"s_mov_b32 exec_lo, 0")
    k(f"s_mov_b32 exec_hi, {sT2}")
    for row in range(NR):
        k(f"buffer_store_dword {acc[row]}, {vT0}, {srdWS}, {sT} offen offset:{row * 4}")
    k("s_mov_b64 exec, -1")
    k.wait(lgkm=0)
    k("s_barrier")
    k(f"v_and_b32 {vT0}, 15, {vLane}")
    k(f"v_lshrrev_b32 {vT1}, 2, {vT0}")
    k(f"v_and_b32 {vT0}, 3, {vT0}")
    k(f"v_lshlrev_b32 {vT0}, 3, {vT0}")
    k(f"v_lshl_add_u32 {vT0}, {vT1}, 10, {vT0}")
    k(f"v_lshrrev_b32 {vT1}, 4, {vLane}")
    k(f"v_lshl_add_u32 {vT0}, {vT1}, 5, {vT0}")
    k(f"s_lshl_b32 {sT}, {sWv}, 7")
    k(f"v_add_u32 {vT0}, {sT}, {vT0}")
    k(f"v_lshlrev_b32 {vT1}, 12, {vLane}")
    k(f"s_lshl_b32 {sT}, {sWv}, 18")
    k(f"s_lshl_b32 {sT2}, {sS0}, 1")
    k(f"s_add_u32 {sT}, {sT}, {sT2}")
    k(f"s_add_u32 {sT}, {sT}, {WS_KVT}")
    tr = [k.v(4, 2) for _ in range(4)]
    for j in range(4):
        k(f"ds_read_b64_tr_b16 {tr[j][0:2]}, {vT0} offset:{j * 8192}")
        k(f"ds_read_b64_tr_b16 {tr[j][2:4]}, {vT0} offset:{j * 8192 + 4096}")
    for j in range(4):
        k(f"s_add_u32 {sT2}, {sT}, {j * 16}")
        k(f"buffer_store_dwordx4 {tr[j]}, {vT1}, {srdWS}, {sT2} offen")
    k("s_endpgm")
```

```python
from asmlib import Kern, R
from common import *
from k1 import srd


import os
MODE = os.environ.get("ATTN_MODE", "")


def build():
    k = Kern("attn_kernel")
    k("s_cmp_ge_u32 s2, 256")
    k("s_cbranch_scc1 L_a_exit")
    k("v_lshrrev_b32 v1, 6, v0")
    k("s_nop 0")
    k("v_readfirstlane_b32 s12, v1")
    k("s_nop 3")
    k("s_cmp_ge_u32 s12, 8")
    k("s_cbranch_scc1 L_a_conv")
    sWS = R("s", 4, 2)
    srdWS = R("s", 8, 4)
    sWv, sH, sQb, sT, sT2, sHead = (R("s", i) for i in range(12, 18))
    sMask = R("s", 20, 2)
    k(f"s_load_dwordx2 {sWS}, s[0:1], {KA['ws']}")
    k.v.cur = 1
    vLane, vT0, vT1, vT2 = (k.v() for _ in range(4))
    vL16 = k.v()
    vKa = k.v()
    vVa = k.v()
    vM = k.v()
    k(f"v_and_b32 {vLane}, 63, v0")
    k(f"v_lshrrev_b32 {vT0}, 6, v0")
    k(f"v_readfirstlane_b32 {sWv}, {vT0}")
    k(f"s_and_b32 {sH}, s2, 31")
    k(f"s_lshr_b32 {sQb}, s2, 5")
    k(f"v_lshlrev_b32 {vL16}, 4, {vLane}")
    k(f"v_and_b32 {vT0}, 31, {vLane}")
    k(f"v_lshrrev_b32 {vT1}, 5, {vLane}")
    k(f"v_lshlrev_b32 {vT2}, 4, {vT0}")
    k(f"v_lshl_add_u32 {vKa}, {vT1}, 15, {vT2}")
    k(f"v_lshlrev_b32 {vT2}, 5, {vT0}")
    k(f"v_lshl_add_u32 {vT2}, {vT1}, 4, {vT2}")
    k(f"v_add_u32 {vVa}, 65536, {vT2}")
    k(f"s_mov_b32 {sMask[0]}, 0x0000ffff")
    k(f"s_mov_b32 {sMask[1]}, 0x0000ffff")
    k("s_waitcnt lgkmcnt(0)")
    srd(k, srdWS, sWS, WS_END)
    k(f"s_lshl_b32 {sHead}, {sH}, 16")
    qf = k.v(4, 2)
    k(f"s_lshl_b32 {sT}, {sQb}, 8")
    k(f"s_lshl_b32 {sT2}, {sWv}, 5")
    k(f"s_add_u32 {sQb}, {sT}, {sT2}")
    k(f"s_lshl_b32 {sT}, {sQb}, 4")
    k(f"s_add_u32 {sT}, {sT}, {sHead}")
    k(f"buffer_load_dwordx4 {qf}, {vKa}, {srdWS}, {sT} offen")
    k(f"s_lshr_b32 {sT}, {sWv}, 2")
    k(f"s_lshl_b32 {sT}, {sT}, 15")
    k(f"s_and_b32 {sT2}, {sWv}, 3")
    k(f"s_lshl_b32 {sT2}, {sT2}, 12")
    k(f"s_add_u32 {sT2}, {sT2}, {sT}")
    for c in range(2):
        k(f"s_add_u32 m0, {sT2}, {c * 16384}")
        k(f"s_add_u32 {sT}, {sHead}, {sT2}")
        k(f"s_add_u32 {sT}, {sT}, {WS_K + c * 16384}")
        for j in range(4):
            k(f"buffer_load_dwordx4 {vL16}, {srdWS}, {sT} offen offset:{j * 1024} lds")
    k(f"s_lshl_b32 {sT2}, {sWv}, 12")
    for c in range(2):
        k(f"s_add_u32 m0, {sT2}, {65536 + c * 32768}")
        k(f"s_add_u32 {sT}, {sHead}, {sT2}")
        k(f"s_add_u32 {sT}, {sT}, {WS_VT + c * 32768}")
        for j in range(4):
            k(f"buffer_load_dwordx4 {vL16}, {srdWS}, {sT} offen offset:{j * 1024} lds")
    kf = [k.v(4, 2) for _ in range(3)]
    Sx = [k.v(16, 2) for _ in range(2)]
    Cb = k.v(16, 2)
    P = [k.v(8, 2) for _ in range(2)]
    Vf = [[k.v(4, 2) for _ in range(2)] for _ in range(2)]
    O = k.v(16, 2)
    k(f"v_and_b32 {vT0}, 31, {vLane}")
    k(f"v_and_b32 {vT1}, 27, {vT0}")
    k(f"v_mov_b32 {vT2}, 0x3f803f80")
    k(f"v_cmp_eq_u32 vcc, 16, {vT1}")
    k(f"v_cndmask_b32 {vT2}, 0, {vT2}, vcc")
    for b in range(2):
        for hh in range(2):
            for r in range(4):
                k(f"v_mov_b32 {Vf[b][hh][r]}, {vT2}")
    k(f"v_mov_b32 {vM}, 0xff800000")
    k.wait(vm=12)
    k("s_barrier")

    def kread(t):
        k(f"ds_read_b128 {kf[t % 3]}, {vKa} offset:{t * 512}")

    kread(0); kread(1)
    for t in range(0 if MODE in ('p2', 'pro') else 65):
        if t + 2 == 32:
            k.wait(vm=8)
            k("s_barrier")
        if t + 2 < 64:
            kread(t + 2)
        if t < 64:
            k(f"v_mfma_f32_32x32x16_bf16 {Sx[t & 1]}, {kf[t % 3]}, {qf}, 0")
        if t >= 1:
            s = Sx[(t - 1) & 1]
            for j in range(8):
                k(f"v_max3_f32 {vM}, {vM}, {s[2 * j]}, {s[2 * j + 1]}")
    k(f"v_mov_b32 {vT0}, {vM}")
    k(f"v_permlane32_swap_b32 {vM}, {vT0}")
    k(f"v_max_f32 {vM}, {vM}, {vT0}")
    for r in range(16):
        k(f"v_sub_f32 {Cb[r]}, 0, {vM}")
    k.wait(vm=4)
    k("s_barrier")

    def vread(t):
        k(f"s_mov_b64 exec, {sMask}")
        for hh in range(2):
            k(f"ds_read_b128 {Vf[t & 1][hh]}, {vVa} offset:{(2 * t + hh) * 512}")
        k("s_mov_b64 exec, -1")

    def pv(t, hh):
        c = "0" if (t == 0 and hh == 0) else str(O)
        k(f"v_mfma_f32_32x32x16_bf16 {O}, {Vf[t & 1][hh]}, {P[t & 1][4 * hh:4 * hh + 4]}, {c}")

    kread(0); kread(1)
    k(f"v_mfma_f32_32x32x16_bf16 {Sx[0]}, {kf[0]}, {qf}, {Cb}")
    for t in range(0 if MODE in ('p1', 'pro') else 65):
        s = Sx[t & 1]
        p = P[t & 1]
        if t + 2 < 64:
            kread(t + 2)
        if t + 1 < 64:
            k(f"v_mfma_f32_32x32x16_bf16 {Sx[(t + 1) & 1]}, {kf[(t + 1) % 3]}, {qf}, {Cb}")
        if t == 32:
            k.wait(vm=0)
            k("s_barrier")
        if t < 64:
            vread(t)
            for r in range(8):
                k(f"v_exp_f32 {s[r]}, {s[r]}")
        if t >= 1:
            pv(t - 1, 0)
        if t < 64:
            for r in range(8, 16):
                k(f"v_exp_f32 {s[r]}, {s[r]}")
        if t >= 1:
            pv(t - 1, 1)
        if t < 64:
            for j in range(8):
                k(f"v_cvt_pk_bf16_f32 {p[j]}, {s[2 * j]}, {s[2 * j + 1]}")
    k(f"v_rcp_f32 {vT0}, {O[8]}")
    for r in range(8):
        k(f"v_mul_f32 {O[r]}, {O[r]}, {vT0}")
    for j in range(4):
        k(f"v_cvt_pk_bf16_f32 {P[0][j]}, {O[2 * j]}, {O[2 * j + 1]}")
    k(f"v_and_b32 {vT0}, 31, {vLane}")
    k(f"v_lshrrev_b32 {vT1}, 5, {vLane}")
    k(f"v_lshlrev_b32 {vT0}, 10, {vT0}")
    k(f"v_lshl_add_u32 {vT0}, {vT1}, 3, {vT0}")
    k(f"s_lshl_b32 {sT}, {sQb}, 10")
    k(f"s_lshl_b32 {sT2}, {sH}, 5")
    k(f"s_add_u32 {sT}, {sT}, {sT2}")
    k(f"s_add_u32 {sT}, {sT}, {WS_O}")
    k(f"buffer_store_dwordx2 {P[0][0:2]}, {vT0}, {srdWS}, {sT} offen")
    k(f"buffer_store_dwordx2 {P[0][2:4]}, {vT0}, {srdWS}, {sT} offen offset:16")
    k("s_endpgm")
    k.label("L_a_conv")
    if os.environ.get("CONV_MODE") == "none":
        for _ in range(4):
            k("s_barrier")
        k("s_endpgm")
    k("s_sub_u32 s12, s12, 8")
    import kconv2
    kconv2.conv_role(k, R("s", 12), (15, 31))
    k.label("L_a_exit")
    k("s_endpgm")
    return k
```

```python
from asmlib import R
from common import *
from k1 import srd

CB = 131072
ZB = CB + 4608
TB = CB + 13824
LDS_END = TB + 2 * 8576
assert LDS_END <= 163840


def conv_role(k, sWvc, barrier_points):
    sWS, sH, sD = R("s", 40, 2), R("s", 42, 2), R("s", 44, 2)
    srdWS, srdH, srdD = R("s", 48, 4), R("s", 52, 4), R("s", 56, 4)
    sCj, sNt, sCh, sT, sT2 = (R("s", i) for i in range(60, 65))
    k("s_barrier")
    k(f"s_load_dwordx2 {sWS}, s[0:1], {KA['ws']}")
    k(f"s_load_dwordx2 {sH}, s[0:1], {KA['ssmk']}")
    k(f"s_load_dwordx2 {sD}, s[0:1], {KA['ssmd']}")
    k.v.cur = 1
    vLane, vL16, vT0, vT1, vT2, vXA, vB, vDs, vG, vA = (k.v() for _ in range(10))
    k(f"v_and_b32 {vLane}, 63, v0")
    k(f"v_lshlrev_b32 {vL16}, 4, {vLane}")
    k(f"s_lshr_b32 {sCj}, {sWvc}, 1")
    k(f"s_and_b32 {sNt}, {sWvc}, 1")
    k(f"s_lshl_b32 {sCh}, s2, 1")
    k(f"s_add_u32 {sCh}, {sCh}, {sCj}")
    k("s_waitcnt lgkmcnt(0)")
    srd(k, srdWS, sWS, WS_END)
    srd(k, srdH, sH, D * S * 2)
    srd(k, srdD, sD, D * 2)
    Dacc = k.v(16, 2)
    r4 = [k.v(4, 2) for _ in range(4)]
    k(f"s_lshl_b32 {sT}, {sCh}, 1")
    k(f"v_mov_b32 {vT0}, {sT}")
    k(f"buffer_load_ushort {vDs}, {vT0}, {srdD}, 0 offen")
    k(f"s_lshl_b32 {sT}, {sCh}, 12")
    k(f"s_cmp_eq_u32 {sNt}, 1")
    k("s_cbranch_scc1 L_cv_tables")
    k(f"s_add_u32 {sT2}, {sT}, {WS_KVT}")
    for j in range(4):
        k(f"buffer_load_dwordx4 {r4[j]}, {vL16}, {srdWS}, {sT2} offen offset:{j * 1024}")
    k.wait(vm=0)
    k(f"s_cmp_eq_u32 {sCj}, 1")
    k("s_cbranch_scc1 L_cv_x1")
    z4 = Dacc[0:4]
    for r in range(4):
        k(f"v_mov_b32 {z4[r]}, 0")
    k(f"v_add_u32 {vT0}, {ZB}, {vL16}")
    for j in range(4):
        k(f"ds_write_b128 {vT0}, {z4} offset:{j * 1024}")
    k(f"s_mov_b32 exec_hi, 0")
    k(f"s_mov_b32 exec_lo, 0x7fffff")
    k(f"ds_write_b128 {vT0}, {z4} offset:4096")
    k("s_mov_b64 exec, -1")
    k(f"v_lshrrev_b32 {vT1}, 3, {vLane}")
    k(f"v_mul_u32_u24 {vT1}, 144, {vT1}")
    k(f"v_and_b32 {vT2}, 7, {vLane}")
    k(f"v_lshl_add_u32 {vT1}, {vT2}, 4, {vT1}")
    k(f"v_add_u32 {vT1}, {ZB + 31 * 144}, {vT1}")
    for j in range(4):
        k(f"ds_write_b128 {vT1}, {r4[j]} offset:{8 * j * 144}")
    k("s_branch L_cv_built")
    k.label("L_cv_x1")
    k(f"v_lshrrev_b32 {vT1}, 3, {vLane}")
    k(f"v_mul_u32_u24 {vT1}, 144, {vT1}")
    k(f"v_and_b32 {vT2}, 7, {vLane}")
    k(f"v_lshlrev_b32 {vT2}, 4, {vT2}")
    k(f"v_sub_u32 {vT1}, {vT2}, {vT1}")
    k(f"v_add_u32 {vT1}, {ZB - 144 - 31 * 144}, {vT1}")
    for j in range(4):
        k(f"ds_write_b128 {vT1}, {r4[j]} offset:{(31 - 8 * j) * 144}")
    k("s_branch L_cv_built")
    k.label("L_cv_tables")
    for j in range(4):
        k(f"buffer_load_dwordx4 {r4[j]}, {vL16}, {srdH}, {sT} offen offset:{j * 1024}")
    k(f"s_mul_i32 {sT2}, {sCj}, 8576")
    k(f"s_add_u32 {sT2}, {sT2}, {TB}")
    z4 = Dacc[0:4]
    rv = Dacc[4:8]
    for r in range(4):
        k(f"v_mov_b32 {z4[r]}, 0")
    k(f"v_add_u32 {vT0}, {sT2}, {vL16}")
    k("s_mov_b64 exec, 0xff")
    k(f"ds_write_b128 {vT0}, {z4} offset:4096")
    k("s_mov_b64 exec, -1")
    k(f"v_sub_u32 {vT1}, {sT2}, {vL16}")
    for j in range(4):
        for i in range(4):
            k(f"v_alignbit_b32 {rv[i]}, {r4[j][3 - i]}, {r4[j][3 - i]}, 16")
        k(f"ds_write_b128 {vT1}, {rv} offset:{(255 - 64 * j) * 16}")
    ee = [r4[0], r4[1]]
    nx = [r4[2][0], r4[2][1]]
    for j in range(5):
        if j == 4:
            k("s_mov_b64 exec, 0xff")
        c = ee[j & 1]
        k(f"ds_read_b128 {c}, {vT0} offset:{j * 1024}")
        k(f"ds_read_b32 {nx[j & 1]}, {vT0} offset:{j * 1024 + 16}")
        for i in range(3):
            k(f"v_alignbit_b32 {rv[i]}, {c[i + 1]}, {c[i]}, 16")
        k(f"v_alignbit_b32 {rv[3]}, {nx[j & 1]}, {c[3]}, 16")
        k(f"ds_write_b128 {vT0}, {rv} offset:{4288 + j * 1024}")
    k("s_mov_b64 exec, -1")
    k.label("L_cv_built")
    k.wait(vm=0, lgkm=0)
    k("s_barrier")
    k(f"v_and_b32 {vA}, 31, {vLane}")
    k(f"v_lshrrev_b32 {vG}, 5, {vLane}")
    k(f"v_mul_u32_u24 {vT0}, 144, {vA}")
    k(f"s_mul_i32 {sT2}, {sCj}, 8576")
    k(f"s_add_u32 {sT2}, {sT2}, {TB}")
    k(f"v_and_b32 {vT2}, 1, {vA}")
    k(f"v_mul_u32_u24 {vT2}, 4288, {vT2}")
    k(f"v_sub_u32 {vB}, {4288 + 4092}, {vT2}")
    k(f"v_and_b32 {vT2}, 30, {vA}")
    k(f"v_lshlrev_b32 {vT2}, 1, {vT2}")
    k(f"v_sub_u32 {vB}, {vB}, {vT2}")
    k(f"v_lshl_add_u32 {vB}, {vG}, 4, {vB}")
    k(f"v_add_u32 {vB}, {sT2}, {vB}")
    k(f"s_lshl_b32 {sT}, {sNt}, 6")
    k(f"v_subrev_u32 {vB}, {sT}, {vB}")

    bfr = [k.v(4, 2) for _ in range(8)]
    xa = [[k.v(4, 2) for _ in range(4)] for _ in range(2)]

    def bread(m, kk):
        o = kk * 8
        f = bfr[(m & 1) * 4 + kk]
        k(f"ds_read2_b32 {f[0:2]}, {vB} offset0:{o} offset1:{o + 1}")
        k(f"ds_read2_b32 {f[2:4]}, {vB} offset0:{o + 2} offset1:{o + 3}")

    def variant(cj):
        if cj == 0:
            k(f"v_lshl_add_u32 {vXA}, {vG}, 4, {vT0}")
            k(f"v_add_u32 {vXA}, {ZB}, {vXA}")
            aoff = lambda m, kk: (31 - m) * 144 + kk * 32
        else:
            k(f"v_lshlrev_b32 {vXA}, 4, {vG}")
            k(f"v_sub_u32 {vXA}, {vXA}, {vT0}")
            k(f"v_add_u32 {vXA}, {ZB - 144}, {vXA}")
            aoff = lambda m, kk: m * 144 + kk * 32

        def aread(m, kk):
            k(f"ds_read_b128 {xa[m & 1][kk]}, {vXA} offset:{aoff(m, kk)}")

        for kk in range(4):
            bread(0, kk)
            aread(0, kk)
        for m in range(32):
            if m + 1 < 32:
                k(f"v_subrev_u32 {vB}, 128, {vB}")
            for kk in range(4):
                if m + 1 < 32:
                    aread(m + 1, kk)
                    bread(m + 1, kk)
                c = "0" if (m == 0 and kk == 0) else str(Dacc)
                k(f"v_mfma_f32_32x32x16_bf16 {Dacc}, {xa[m & 1][kk]}, {bfr[(m & 1) * 4 + kk]}, {c}")
            if m in barrier_points:
                k("s_barrier")
        if cj == 0:
            k(f"v_mul_u32_u24 {vXA}, {4 * 144}, {vG}")
            k(f"v_lshl_add_u32 {vXA}, {vA}, 1, {vXA}")
            k(f"v_add_u32 {vXA}, {ZB + 31 * 144}, {vXA}")
            roff = lambda ra: ra * 144
        else:
            k(f"v_mul_u32_u24 {vXA}, {4 * 144}, {vG}")
            k(f"v_lshlrev_b32 {vT0}, 1, {vA}")
            k(f"v_sub_u32 {vXA}, {vT0}, {vXA}")
            k(f"v_add_u32 {vXA}, {ZB - 144 - 27 * 144}, {vXA}")
            roff = lambda ra: (27 - ra) * 144
        k(f"s_lshl_b32 {sT}, {sNt}, 6")
        k(f"v_add_u32 {vXA}, {sT}, {vXA}")
        k(f"v_lshlrev_b32 {vB}, 9, {vG}")
        k(f"v_lshl_add_u32 {vB}, {vA}, 1, {vB}")
        k(f"v_add_u32 {vB}, {sT}, {vB}")
        k(f"s_lshl_b32 {sT}, {sCh}, 12")
        k(f"s_add_u32 {sT}, {sT}, {WS_ZT}")
        e = [bfr[0][i] for i in range(4)]
        for r in range(16):
            ra = (r & 3) + 8 * (r >> 2)
            k(f"ds_read_u16 {R('v', xa[0][0].i + r)}, {vXA} offset:{roff(ra)}")
        for r in range(0, 16, 2):
            kv0, kv1 = R("v", xa[0][0].i + r), R("v", xa[0][0].i + r + 1)
            k(f"v_lshlrev_b32 {kv0}, 16, {kv0}")
            k(f"v_lshlrev_b32 {kv1}, 16, {kv1}")
            k(f"v_mul_f32 {kv0}, {kv0}, {vDs}")
            k(f"v_mul_f32 {kv1}, {kv1}, {vDs}")
            k(f"v_cvt_pk_bf16_f32 {e[0]}, {kv0}, {kv1}")
            k(f"v_lshlrev_b32 {kv0}, 16, {e[0]}")
            k(f"v_and_b32 {kv1}, 0xffff0000, {e[0]}")
            k(f"v_cvt_pk_bf16_f32 {e[1]}, {Dacc[r]}, {Dacc[r + 1]}")
            k(f"v_lshlrev_b32 {e[2]}, 16, {e[1]}")
            k(f"v_and_b32 {e[3]}, 0xffff0000, {e[1]}")
            k(f"v_add_f32 {e[2]}, {e[2]}, {kv0}")
            k(f"v_add_f32 {e[3]}, {e[3]}, {kv1}")
            k(f"v_cvt_pk_bf16_f32 {e[0]}, {e[2]}, {e[3]}")
            ra0 = (r & 3) + 8 * (r >> 2)
            k(f"buffer_store_short {e[0]}, {vB}, {srdWS}, {sT} offen offset:{ra0 * 128}")
            k(f"buffer_store_short_d16_hi {e[0]}, {vB}, {srdWS}, {sT} offen offset:{(ra0 + 1) * 128}")
        k("s_endpgm")

    k(f"v_lshlrev_b32 {vDs}, 16, {vDs}")
    k(f"s_cmp_eq_u32 {sCj}, 1")
    k("s_cbranch_scc1 L_cv_var1")
    variant(0)
    k.label("L_cv_var1")
    variant(1)
```

```python
import struct
from asmlib import Kern, R
from common import *


def f32hex(x):
    return "0x%08x" % struct.unpack("<I", struct.pack("<f", x))[0]


def srd(k, sd, sp, nbytes):
    k(f"s_mov_b32 {sd[0]}, {sp[0]}")
    k(f"s_and_b32 {sd[1]}, {sp[1]}, 0xffff")
    k(f"s_mov_b32 {sd[2]}, {nbytes}")
    k(f"s_mov_b32 {sd[3]}, 0x00020000")


def gemm_role(k):
    sX, sW, sWS = R("s", 4, 2), R("s", 6, 2), R("s", 8, 2)
    srdX, srdW, srdWS = R("s", 12, 4), R("s", 16, 4), R("s", 20, 4)
    sMt, sNt, sWv, sT, sLdsW, sGA, sGB, sOut = (R("s", i) for i in range(24, 32))
    sWr, sWc, sT2, sSec = (R("s", i) for i in range(32, 36))
    k(f"s_load_dwordx2 {sX}, s[0:1], {KA['q']}")
    k(f"s_load_dwordx2 {sW}, s[0:1], {KA['wqkv']}")
    k(f"s_load_dwordx2 {sWS}, s[0:1], {KA['ws']}")
    k.v.cur = 1
    vLane = k.v()
    vT0, vT1, vT2, vT3 = (k.v() for _ in range(4))
    vOffA = [k.v(), k.v()]
    vOffB = k.v()
    vXa = [k.v() for _ in range(4)]
    vWa = k.v()
    vXc = [k.v() for _ in range(4)]
    vWc = k.v()
    vSt = k.v()
    k(f"v_and_b32 {vLane}, 63, v0")
    k(f"v_lshrrev_b32 {vT0}, 6, v0")
    k(f"v_readfirstlane_b32 {sWv}, {vT0}")
    k(f"s_and_b32 {sT}, s2, 7")
    k(f"s_lshr_b32 {sT2}, s2, 3")
    k(f"s_mul_i32 {sSec}, {sT2}, 43")
    k(f"s_lshr_b32 {sSec}, {sSec}, 8")
    k(f"s_mul_i32 {sNt}, {sSec}, 6")
    k(f"s_sub_u32 {sNt}, {sT2}, {sNt}")
    k(f"s_lshr_b32 {sMt}, {sT}, 1")
    k(f"s_lshl_b32 {sMt}, {sMt}, 2")
    k(f"s_add_u32 {sMt}, {sMt}, {sSec}")
    k(f"s_and_b32 {sT}, {sT}, 1")
    k(f"s_mul_i32 {sT}, {sT}, 6")
    k(f"s_add_u32 {sNt}, {sNt}, {sT}")
    k(f"s_lshr_b32 {sWr}, {sWv}, 2")
    k(f"s_and_b32 {sWc}, {sWv}, 3")
    k(f"v_lshrrev_b32 {vT0}, 3, {vLane}")
    k(f"v_and_b32 {vT1}, 7, {vLane}")
    k(f"v_lshrrev_b32 {vT2}, 4, {vLane}")
    k(f"v_xor_b32 {vT3}, {vT1}, {vT2}")
    k(f"v_lshlrev_b32 {vT3}, 4, {vT3}")
    k(f"v_lshl_add_u32 {vOffA[0]}, {vT0}, 10, {vT3}")
    k(f"v_xor_b32 {vOffA[1]}, 64, {vOffA[0]}")
    k(f"v_and_b32 {vT1}, 15, {vLane}")
    k(f"v_lshlrev_b32 {vT3}, 2, {vT2}")
    k(f"v_xor_b32 {vT3}, {vT1}, {vT3}")
    k(f"v_lshlrev_b32 {vT3}, 4, {vT3}")
    k(f"s_movk_i32 {sT}, 3072")
    k(f"v_mul_lo_u32 {vT1}, {vT2}, {sT}")
    k(f"v_add_u32 {vOffB}, {vT1}, {vT3}")
    k(f"v_and_b32 {vT0}, 31, {vLane}")
    k(f"v_lshrrev_b32 {vT1}, 5, {vLane}")
    k(f"v_lshrrev_b32 {vT2}, 1, {vT0}")
    k(f"v_and_b32 {vT2}, 7, {vT2}")
    k(f"s_lshl_b32 {sT}, {sWr}, 13")
    k(f"v_lshlrev_b32 {vT3}, 7, {vT0}")
    k(f"v_add_u32 {vT3}, {sT}, {vT3}")
    for kk in range(4):
        k(f"v_or_b32 {vSt}, {2 * kk}, {vT1}")
        k(f"v_xor_b32 {vSt}, {vSt}, {vT2}")
        k(f"v_lshl_add_u32 {vXa[kk]}, {vSt}, 4, {vT3}")
    k(f"v_lshrrev_b32 {vT0}, 4, {vLane}")
    k(f"v_and_b32 {vT1}, 15, {vLane}")
    k(f"v_lshrrev_b32 {vT2}, 2, {vT1}")
    k(f"v_and_b32 {vT1}, 3, {vT1}")
    k(f"v_lshrrev_b32 {vT3}, 1, {vT0}")
    k(f"v_lshl_add_u32 {vT3}, {vT3}, 3, {vT2}")
    k(f"v_lshlrev_b32 {vT3}, 8, {vT3}")
    k(f"v_add_u32 {vT3}, 16384, {vT3}")
    k(f"v_and_b32 {vSt}, 1, {vT1}")
    k(f"v_lshl_add_u32 {vT3}, {vSt}, 3, {vT3}")
    k(f"v_and_b32 {vT0}, 1, {vT0}")
    k(f"v_lshrrev_b32 {vT1}, 1, {vT1}")
    k(f"v_lshl_add_u32 {vT0}, {vT0}, 1, {vT1}")
    k(f"s_lshl_b32 {sT}, {sWc}, 2")
    k(f"v_add_u32 {vT0}, {sT}, {vT0}")
    k(f"v_lshlrev_b32 {vT2}, 2, {vT2}")
    k(f"v_xor_b32 {vSt}, {vT0}, {vT2}")
    k(f"v_lshl_add_u32 {vWa}, {vSt}, 4, {vT3}")
    k("s_waitcnt lgkmcnt(0)")
    srd(k, srdX, sX, S * D * 2)
    srd(k, srdW, sW, D * 3 * D * 2)
    srd(k, srdWS, sWS, WS_END)
    k(f"s_lshl_b32 {sLdsW}, {sWv}, 11")
    k(f"s_lshl_b32 {sT}, {sMt}, 7")
    k(f"s_lshl_b32 {sT2}, {sWv}, 4")
    k(f"s_add_u32 {sT}, {sT}, {sT2}")
    k(f"s_lshl_b32 {sGA}, {sT}, 10")
    k(f"s_mul_i32 {sGB}, {sWv}, {8 * 3072}")
    k(f"s_lshl_b32 {sT}, {sNt}, 8")
    k(f"s_add_u32 {sGB}, {sGB}, {sT}")

    acc = [k.v(16, 2) for _ in range(2)]
    xf = [[k.v(4, 2) for _ in range(2)] for _ in range(2)]
    wf = [k.v(4, 2) for _ in range(2)]

    def dma_stage(st):
        slot = (st % 4) * 32768
        kb = st * 64
        for jj in range(2):
            k(f"s_add_u32 m0, {sLdsW}, {slot + jj * 1024}")
            k(f"s_add_u32 {sT}, {sGA}, {jj * 8192 + kb * 2}")
            k(f"buffer_load_dwordx4 {vOffA[jj & 1]}, {srdX}, {sT} offen lds")
        for jj in range(2):
            k(f"s_add_u32 m0, {sLdsW}, {slot + 16384 + jj * 1024}")
            k(f"s_add_u32 {sT}, {sGB}, {(jj * 4 + kb) * 3072}")
            k(f"buffer_load_dwordx4 {vOffB}, {srdW}, {sT} offen lds")

    def setslot(st):
        slot = (st % 4) * 32768
        for kk in range(4):
            k(f"v_add_u32 {vXc[kk]}, {slot}, {vXa[kk]}")
        k(f"v_add_u32 {vWc}, {slot}, {vWa}")

    def reads(i):
        kk, b = i % 4, i & 1
        for rt in range(2):
            k(f"ds_read_b128 {xf[b][rt]}, {vXc[kk]} offset:{rt * 4096}")
        k(f"ds_read_b64_tr_b16 {wf[b][0:2]}, {vWc} offset:{kk * 4096}")
        k(f"ds_read_b64_tr_b16 {wf[b][2:4]}, {vWc} offset:{kk * 4096 + 1024}")

    def body(transposed):
        for st in range(3):
            dma_stage(st)
        k.wait(vm=8)
        k("s_barrier")
        dma_stage(3)
        setslot(0)
        reads(0)
        for i in range(32):
            if i + 1 < 32:
                if (i + 1) % 4 == 0:
                    st = (i + 1) // 4
                    k.wait(vm=4 * (min(st + 2, 7) - st), lgkm=0)
                    k("s_barrier")
                    if st + 3 < 8:
                        dma_stage(st + 3)
                    setslot(st)
                reads(i + 1)
            b = i & 1
            for rt in range(2):
                c = "0" if i == 0 else str(acc[rt])
                if transposed:
                    k(f"v_mfma_f32_32x32x16_bf16 {acc[rt]}, {wf[b]}, {xf[b][rt]}, {c}")
                else:
                    k(f"v_mfma_f32_32x32x16_bf16 {acc[rt]}, {xf[b][rt]}, {wf[b]}, {c}")

    def pack(a, dst, scale=None):
        if scale is not None:
            for r in range(16):
                k(f"v_mul_f32 {a[r]}, {scale}, {a[r]}")
        for j in range(8):
            k(f"v_cvt_pk_bf16_f32 {dst[j]}, {a[2 * j]}, {a[2 * j + 1]}")

    pk = [k.v(8, 2) for _ in range(2)]
    k(f"s_cmp_ge_u32 {sNt}, 8")
    k("s_cbranch_scc1 L_gemm_v")
    body(True)
    k(f"v_and_b32 {vT0}, 31, {vLane}")
    k(f"v_lshrrev_b32 {vT1}, 5, {vLane}")
    k(f"s_lshl_b32 {sT}, {sWr}, 6")
    k(f"v_add_u32 {vT0}, {sT}, {vT0}")
    k(f"v_lshlrev_b32 {vT0}, 4, {vT0}")
    k(f"v_lshl_add_u32 {vSt}, {vT1}, 15, {vT0}")
    k(f"s_and_b32 {sT}, {sNt}, 3")
    k(f"s_lshl_b32 {sT}, {sT}, 2")
    k(f"s_add_u32 {sT}, {sT}, {sWc}")
    k(f"s_lshl_b32 {sOut}, {sT}, 17")
    k(f"s_lshl_b32 {sT}, {sMt}, 11")
    k(f"s_add_u32 {sOut}, {sOut}, {sT}")
    k(f"s_lshr_b32 {sT}, {sNt}, 2")
    k(f"s_lshl_b32 {sT}, {sT}, 21")
    k(f"s_add_u32 {sOut}, {sOut}, {sT}")
    k(f"s_mov_b32 {sSec}, {f32hex(QSCALE)}")
    k(f"s_cmp_lt_u32 {sNt}, 4")
    k(f"s_cselect_b32 {sSec}, {sSec}, 1.0")
    k(f"s_cmp_lt_u32 {sNt}, 4")
    k("s_cbranch_scc1 L_gemm_qk_store")
    nrm = [k.v(), k.v()]
    ntmp = k.v()
    for hh in range(2):
        for rt in range(2):
            a = acc[rt]
            k(f"v_mul_f32 {ntmp}, {a[8 * hh]}, {a[8 * hh]}")
            for r in range(1, 8):
                k(f"v_fmac_f32 {ntmp}, {a[8 * hh + r]}, {a[8 * hh + r]}")
            k(f"v_mov_b32 {vT0}, {ntmp}")
            k(f"v_mov_b32 {vT1}, {ntmp}")
            k(f"v_permlane32_swap_b32 {vT0}, {vT1}")
            k(f"v_add_f32 {ntmp}, {vT0}, {vT1}")
            if rt == 0:
                k(f"v_mov_b32 {nrm[hh]}, {ntmp}")
            else:
                k(f"v_max_f32 {nrm[hh]}, {nrm[hh]}, {ntmp}")
    for sh in ("row_shr:1", "row_shr:2", "row_shr:4", "row_shr:8"):
        for hh in range(2):
            k(f"v_max_f32_dpp {nrm[hh]}, {nrm[hh]}, {nrm[hh]} {sh} row_mask:0xf bank_mask:0xf")
    for hh in range(2):
        k(f"v_max_f32_dpp {nrm[hh]}, {nrm[hh]}, {nrm[hh]} row_bcast:15 row_mask:0xa bank_mask:0xf")
    k(f"s_and_b32 {sT}, {sNt}, 3")
    k(f"s_lshl_b32 {sT}, {sT}, 3")
    k(f"s_lshl_b32 {sT2}, {sWc}, 1")
    k(f"s_add_u32 {sT}, {sT}, {sT2}")
    k(f"s_lshl_b32 {sT}, {sT}, 7")
    k(f"s_lshl_b32 {sT2}, {sMt}, 1")
    k(f"s_add_u32 {sT2}, {sT2}, {sWr}")
    k(f"s_lshl_b32 {sT2}, {sT2}, 2")
    k(f"s_add_u32 {sT}, {sT}, {sT2}")
    k(f"s_add_u32 {sT}, {sT}, {WS_KN}")
    k(f"v_mov_b32 {vT0}, 0")
    k(f"s_mov_b32 exec_lo, 0x80000000")
    k(f"s_mov_b32 exec_hi, 0")
    for hh in range(2):
        k(f"buffer_store_dword {nrm[hh]}, {vT0}, {srdWS}, {sT} offen offset:{hh * 128}")
    k("s_mov_b64 exec, -1")
    k.label("L_gemm_qk_store")
    for rt in range(2):
        pack(acc[rt], pk[rt], scale=sSec)
        for half in range(2):
            k(f"s_add_u32 {sT}, {sOut}, {half * 65536}")
            k(f"buffer_store_dwordx4 {pk[rt][4 * half:4 * half + 4]}, {vSt}, {srdWS}, {sT} offen offset:{rt * 512}")
    k("s_endpgm")
    k.label("L_gemm_v")
    body(False)
    k(f"v_and_b32 {vT0}, 15, {vLane}")
    k(f"v_lshlrev_b32 {vT0}, 5, {vT0}")
    k(f"v_lshrrev_b32 {vT1}, 5, {vLane}")
    k(f"v_lshl_add_u32 {vT0}, {vT1}, 4, {vT0}")
    k(f"v_bfe_u32 {vT1}, {vLane}, 4, 1")
    k(f"v_lshl_add_u32 {vSt}, {vT1}, 16, {vT0}")
    k(f"s_and_b32 {sT}, {sNt}, 3")
    k(f"s_lshl_b32 {sT}, {sT}, 2")
    k(f"s_add_u32 {sT}, {sT}, {sWc}")
    k(f"s_lshl_b32 {sOut}, {sT}, 17")
    k(f"s_lshl_b32 {sT}, {sMt}, 3")
    k(f"s_lshl_b32 {sT2}, {sWr}, 2")
    k(f"s_add_u32 {sT}, {sT}, {sT2}")
    k(f"s_lshl_b32 {sT}, {sT}, 9")
    k(f"s_add_u32 {sOut}, {sOut}, {sT}")
    k(f"s_add_u32 {sOut}, {sOut}, {WS_VT}")
    for rt in range(2):
        pack(acc[rt], pk[rt])
        for half in range(2):
            k(f"buffer_store_dwordx4 {pk[rt][4 * half:4 * half + 4]}, {vSt}, {srdWS}, {sOut} offen offset:{rt * 1024 + half * 512}")
    k("s_endpgm")


def prep_role(k):
    NR = 4
    sK, sV, sQ, sSh, sGw, sWS = (R("s", 4 + 2 * i, 2) for i in range(6))
    srdK, srdV, srdQ, srdSh, srdGw, srdWS = (R("s", 16 + 4 * i, 4) for i in range(6))
    sWv, sS0, sR0, sT, sT2 = (R("s", i) for i in range(40, 45))
    for r, key in ((sK, "k"), (sV, "v"), (sQ, "q"), (sSh, "shift"), (sGw, "gatew"), (sWS, "ws")):
        k(f"s_load_dwordx2 {r}, s[0:1], {KA[key]}")
    k.v.cur = 1
    vLane, vL16, vT0, vT1 = (k.v() for _ in range(4))
    k(f"v_and_b32 {vLane}, 63, v0")
    k(f"v_lshrrev_b32 {vT0}, 6, v0")
    k(f"v_readfirstlane_b32 {sWv}, {vT0}")
    k(f"v_lshlrev_b32 {vL16}, 4, {vLane}")
    k(f"s_sub_u32 {sS0}, s2, 192")
    k(f"s_lshl_b32 {sS0}, {sS0}, 5")
    k(f"s_lshl_b32 {sT}, {sWv}, 2")
    k(f"s_add_u32 {sR0}, {sS0}, {sT}")
    k("s_waitcnt lgkmcnt(0)")
    srd(k, srdK, sK, S * D * 2)
    srd(k, srdV, sV, S * D * 2)
    srd(k, srdQ, sQ, S * D * 2)
    srd(k, srdSh, sSh, D * 4 * 2)
    srd(k, srdGw, sGw, D * 2)
    srd(k, srdWS, sWS, WS_END)
    kraw = [k.v(4, 2) for _ in range(NR + 3)]
    vraw = [k.v(4, 2) for _ in range(NR)]
    qraw = [k.v(4, 2) for _ in range(NR)]
    shraw = [k.v(4, 2) for _ in range(4)]
    gw = k.v(4, 2)
    k(f"s_sub_u32 {sT}, {sR0}, 3")
    k(f"s_lshl_b32 {sT}, {sT}, 10")
    for j in range(NR + 3):
        k(f"s_add_u32 {sT2}, {sT}, {j * 1024}")
        k(f"buffer_load_dwordx4 {kraw[j]}, {vL16}, {srdK}, {sT2} offen")
    k(f"v_lshlrev_b32 {vT0}, 6, {vLane}")
    for j in range(4):
        k(f"buffer_load_dwordx4 {shraw[j]}, {vT0}, {srdSh}, 0 offen offset:{j * 16}")
    k(f"s_lshl_b32 {sT}, {sR0}, 10")
    for j in range(NR):
        k(f"s_add_u32 {sT2}, {sT}, {j * 1024}")
        k(f"buffer_load_dwordx4 {vraw[j]}, {vL16}, {srdV}, {sT2} offen")
    for j in range(NR):
        k(f"s_add_u32 {sT2}, {sT}, {j * 1024}")
        k(f"buffer_load_dwordx4 {qraw[j]}, {vL16}, {srdQ}, {sT2} offen")
    k(f"buffer_load_dwordx4 {gw}, {vL16}, {srdGw}, 0 offen")
    tap = [[k.v() for _ in range(8)] for _ in range(4)]
    for j in range(8):
        d0, d1 = shraw[j // 2][2 * (j & 1)], shraw[j // 2][2 * (j & 1) + 1]
        k(f"v_lshlrev_b32 {tap[0][j]}, 16, {d0}")
        k(f"v_and_b32 {tap[1][j]}, 0xffff0000, {d0}")
        k(f"v_lshlrev_b32 {tap[2][j]}, 16, {d1}")
        k(f"v_and_b32 {tap[3][j]}, 0xffff0000, {d1}")
    win = [[k.v() for _ in range(8)] for _ in range(4)]
    vf = [k.v() for _ in range(8)]
    e = [k.v() for _ in range(6)]
    kvp = k.v(4, 2)

    def unpack_row(dst, raw):
        for p in range(4):
            k(f"v_lshlrev_b32 {dst[2 * p]}, 16, {raw[p]}")
            k(f"v_and_b32 {dst[2 * p + 1]}, 0xffff0000, {raw[p]}")

    def rnd(a, b, tmp):
        k(f"v_cvt_pk_bf16_f32 {tmp}, {a}, {b}")
        k(f"v_lshlrev_b32 {a}, 16, {tmp}")
        k(f"v_and_b32 {b}, 0xffff0000, {tmp}")

    for j in range(3):
        unpack_row(win[j & 3], kraw[j])
    k(f"s_lshl_b32 {sT}, {sWv}, 12")
    k(f"v_add_u32 {vT1}, {sT}, {vL16}")
    for row in range(NR):
        unpack_row(win[(row + 3) & 3], kraw[row + 3])
        unpack_row(vf, vraw[row])
        for p in range(4):
            c0, c1 = 2 * p, 2 * p + 1
            for t in range(4):
                kr = win[(row + t) & 3]
                w = tap[3 - t]
                dst = (e[0], e[1]) if t == 0 else (e[2], e[3])
                k(f"v_mul_f32 {dst[0]}, {kr[c0]}, {w[c0]}")
                k(f"v_mul_f32 {dst[1]}, {kr[c1]}, {w[c1]}")
                rnd(dst[0], dst[1], e[4])
                if t > 0:
                    k(f"v_add_f32 {e[0]}, {e[0]}, {e[2]}")
                    k(f"v_add_f32 {e[1]}, {e[1]}, {e[3]}")
                    rnd(e[0], e[1], e[4])
            k(f"v_mul_f32 {e[0]}, {e[0]}, {vf[c0]}")
            k(f"v_mul_f32 {e[1]}, {e[1]}, {vf[c1]}")
            k(f"v_cvt_pk_bf16_f32 {kvp[p]}, {e[0]}, {e[1]}")
        k(f"ds_write_b128 {vT1}, {kvp} offset:{row * 1024}")
    gwf = win[0]
    unpack_row(gwf, gw)
    acc = [k.v() for _ in range(NR)]
    for row in range(NR):
        unpack_row(vf, qraw[row])
        for p in range(4):
            k(f"v_mul_f32 {e[0]}, {vf[2 * p]}, {gwf[2 * p]}")
            k(f"v_mul_f32 {e[1]}, {vf[2 * p + 1]}, {gwf[2 * p + 1]}")
            rnd(e[0], e[1], e[4])
            if p == 0:
                k(f"v_add_f32 {acc[row]}, {e[0]}, {e[1]}")
            else:
                k(f"v_add_f32 {acc[row]}, {acc[row]}, {e[0]}")
                k(f"v_add_f32 {acc[row]}, {acc[row]}, {e[1]}")
    for sh in ("row_shr:1", "row_shr:2", "row_shr:4", "row_shr:8"):
        for row in range(NR):
            k(f"v_add_f32_dpp {acc[row]}, {acc[row]}, {acc[row]} {sh} row_mask:0xf bank_mask:0xf bound_ctrl:0")
    for row in range(NR):
        k(f"v_add_f32_dpp {acc[row]}, {acc[row]}, {acc[row]} row_bcast:15 row_mask:0xa bank_mask:0xf")
    for row in range(NR):
        k(f"v_add_f32_dpp {acc[row]}, {acc[row]}, {acc[row]} row_bcast:31 row_mask:0xc bank_mask:0xf")
    k(f"s_mov_b32 {sT}, 0xbfb8aa3b")
    for row in range(NR):
        a = acc[row]
        k(f"v_cvt_pk_bf16_f32 {a}, {a}, {a}")
        k(f"v_lshlrev_b32 {a}, 16, {a}")
        k(f"v_mul_f32 {a}, {sT}, {a}")
        k(f"v_exp_f32 {a}, {a}")
        k(f"v_add_f32 {a}, 1.0, {a}")
        k(f"v_rcp_f32 {a}, {a}")
        k(f"v_cvt_pk_bf16_f32 {a}, {a}, {a}")
        k(f"v_lshlrev_b32 {a}, 16, {a}")
    k(f"s_lshl_b32 {sT}, {sR0}, 2")
    k(f"s_add_u32 {sT}, {sT}, {WS_G}")
    k(f"v_mov_b32 {vT0}, 0")
    k(f"s_mov_b32 {sT2}, 0x80000000")
    k(f"s_mov_b32 exec_lo, 0")
    k(f"s_mov_b32 exec_hi, {sT2}")
    for row in range(NR):
        k(f"buffer_store_dword {acc[row]}, {vT0}, {srdWS}, {sT} offen offset:{row * 4}")
    k("s_mov_b64 exec, -1")
    k.wait(lgkm=0)
    k("s_barrier")
    k(f"v_and_b32 {vT0}, 15, {vLane}")
    k(f"v_lshrrev_b32 {vT1}, 2, {vT0}")
    k(f"v_and_b32 {vT0}, 3, {vT0}")
    k(f"v_lshlrev_b32 {vT0}, 3, {vT0}")
    k(f"v_lshl_add_u32 {vT0}, {vT1}, 10, {vT0}")
    k(f"v_lshrrev_b32 {vT1}, 4, {vLane}")
    k(f"v_lshl_add_u32 {vT0}, {vT1}, 5, {vT0}")
    k(f"s_lshl_b32 {sT}, {sWv}, 7")
    k(f"v_add_u32 {vT0}, {sT}, {vT0}")
    k(f"v_lshlrev_b32 {vT1}, 12, {vLane}")
    k(f"s_lshl_b32 {sT}, {sWv}, 18")
    k(f"s_lshl_b32 {sT2}, {sS0}, 1")
    k(f"s_add_u32 {sT}, {sT}, {sT2}")
    k(f"s_add_u32 {sT}, {sT}, {WS_KVT}")
    tr = [k.v(4, 2) for _ in range(4)]
    for j in range(4):
        k(f"ds_read_b64_tr_b16 {tr[j][0:2]}, {vT0} offset:{j * 8192}")
        k(f"ds_read_b64_tr_b16 {tr[j][2:4]}, {vT0} offset:{j * 8192 + 4096}")
    for j in range(4):
        k(f"s_add_u32 {sT2}, {sT}, {j * 16}")
        k(f"buffer_store_dwordx4 {tr[j]}, {vT1}, {srdWS}, {sT2} offen")
    k("s_endpgm")
```

```python
import os
import struct
from asmlib import Kern, R
from common import *
from k1 import srd

MODE = os.environ.get("ATTN_MODE", "")


def f32hex(x):
    return "0x%08x" % struct.unpack("<I", struct.pack("<f", x))[0]


def build():
    k = Kern("attn_kernel")
    k("s_cmp_ge_u32 s2, 256")
    k("s_cbranch_scc1 L_a_exit")
    k("v_lshrrev_b32 v1, 6, v0")
    k("s_nop 0")
    k("v_readfirstlane_b32 s12, v1")
    k("s_nop 3")
    k("s_cmp_ge_u32 s12, 8")
    k("s_cbranch_scc1 L_a_conv")
    sWS = R("s", 4, 2)
    srdWS = R("s", 8, 4)
    sWv, sH, sQb, sT, sT2, sHead = (R("s", i) for i in range(12, 18))
    sMask = R("s", 20, 2)
    k(f"s_load_dwordx2 {sWS}, s[0:1], {KA['ws']}")
    k.v.cur = 1
    vLane, vT0, vT1, vT2 = (k.v() for _ in range(4))
    vL16, vKa, vVa, vM, vKn = (k.v() for _ in range(5))
    k(f"v_and_b32 {vLane}, 63, v0")
    k(f"s_and_b32 {sH}, s2, 31")
    k(f"s_lshr_b32 {sQb}, s2, 5")
    k(f"v_lshlrev_b32 {vL16}, 4, {vLane}")
    k(f"v_and_b32 {vT0}, 31, {vLane}")
    k(f"v_lshrrev_b32 {vT1}, 5, {vLane}")
    k(f"v_lshlrev_b32 {vT2}, 4, {vT0}")
    k(f"v_lshl_add_u32 {vKa}, {vT1}, 15, {vT2}")
    k(f"v_lshlrev_b32 {vT2}, 5, {vT0}")
    k(f"v_lshl_add_u32 {vT2}, {vT1}, 4, {vT2}")
    k(f"v_add_u32 {vVa}, 65536, {vT2}")
    k(f"s_mov_b32 {sMask[0]}, 0x0000ffff")
    k(f"s_mov_b32 {sMask[1]}, 0x0000ffff")
    k("s_waitcnt lgkmcnt(0)")
    srd(k, srdWS, sWS, WS_END)
    k(f"s_lshl_b32 {sHead}, {sH}, 16")
    qf = k.v(4, 2)
    k(f"s_lshl_b32 {sT}, {sQb}, 8")
    k(f"s_lshl_b32 {sT2}, {sWv}, 5")
    k(f"s_add_u32 {sQb}, {sT}, {sT2}")
    k(f"s_lshl_b32 {sT}, {sQb}, 4")
    k(f"s_add_u32 {sT}, {sT}, {sHead}")
    k(f"buffer_load_dwordx4 {qf}, {vKa}, {srdWS}, {sT} offen")
    k(f"v_and_b32 {vT2}, 31, {vLane}")
    k(f"v_lshlrev_b32 {vT2}, 2, {vT2}")
    k(f"s_lshl_b32 {sT}, {sH}, 7")
    k(f"s_add_u32 {sT}, {sT}, {WS_KN}")
    k(f"buffer_load_dword {vKn}, {vT2}, {srdWS}, {sT} offen")
    k(f"s_lshr_b32 {sT}, {sWv}, 2")
    k(f"s_lshl_b32 {sT}, {sT}, 15")
    k(f"s_and_b32 {sT2}, {sWv}, 3")
    k(f"s_lshl_b32 {sT2}, {sT2}, 12")
    k(f"s_add_u32 {sT2}, {sT2}, {sT}")
    for c in range(2):
        k(f"s_add_u32 m0, {sT2}, {c * 16384}")
        k(f"s_add_u32 {sT}, {sHead}, {sT2}")
        k(f"s_add_u32 {sT}, {sT}, {WS_K + c * 16384}")
        for j in range(4):
            k(f"buffer_load_dwordx4 {vL16}, {srdWS}, {sT} offen offset:{j * 1024} lds")
        k(f"s_lshl_b32 {sT}, {sWv}, 12")
        k(f"s_add_u32 m0, {sT}, {65536 + c * 32768}")
        k(f"s_add_u32 {sT}, {sT}, {sHead}")
        k(f"s_add_u32 {sT}, {sT}, {WS_VT + c * 32768}")
        for j in range(4):
            k(f"buffer_load_dwordx4 {vL16}, {srdWS}, {sT} offen offset:{j * 1024} lds")
    kf = [k.v(4, 2) for _ in range(3)]
    Sx = [k.v(16, 2) for _ in range(2)]
    Cb = k.v(16, 2)
    P = [k.v(8, 2) for _ in range(2)]
    Vf = [[k.v(4, 2) for _ in range(2)] for _ in range(2)]
    O = k.v(16, 2)
    k(f"v_and_b32 {vT0}, 31, {vLane}")
    k(f"v_and_b32 {vT1}, 27, {vT0}")
    k(f"v_mov_b32 {vT2}, 0x3f803f80")
    k(f"v_cmp_eq_u32 vcc, 16, {vT1}")
    k(f"v_cndmask_b32 {vT2}, 0, {vT2}, vcc")
    for b in range(2):
        for hh in range(2):
            for r in range(4):
                k(f"v_mov_b32 {Vf[b][hh][r]}, {vT2}")
    for j in range(4):
        k(f"v_lshlrev_b32 {vT0}, 16, {qf[j]}")
        k(f"v_and_b32 {vT1}, 0xffff0000, {qf[j]}")
        if j == 0:
            k(f"v_mul_f32 {vM}, {vT0}, {vT0}")
        else:
            k(f"v_fmac_f32 {vM}, {vT0}, {vT0}")
        k(f"v_fmac_f32 {vM}, {vT1}, {vT1}")
    k(f"v_mov_b32 {vT0}, {vM}")
    k(f"v_permlane32_swap_b32 {vM}, {vT0}")
    k(f"v_add_f32 {vM}, {vM}, {vT0}")
    for sh in ("row_shr:1", "row_shr:2", "row_shr:4", "row_shr:8"):
        k(f"v_max_f32_dpp {vKn}, {vKn}, {vKn} {sh} row_mask:0xf bank_mask:0xf")
    k(f"v_max_f32_dpp {vKn}, {vKn}, {vKn} row_bcast:15 row_mask:0xa bank_mask:0xf")
    k(f"v_readlane_b32 {sT}, {vKn}, 31")
    k(f"v_mul_f32 {vM}, {sT}, {vM}")
    k(f"v_sqrt_f32 {vM}, {vM}")
    k(f"v_mul_f32 {vM}, {f32hex(1.01)}, {vM}")
    for r in range(16):
        k(f"v_sub_f32 {Cb[r]}, 0, {vM}")
    k.wait(vm=8)
    k("s_barrier")

    def kread(t):
        k(f"ds_read_b128 {kf[t % 3]}, {vKa} offset:{t * 512}")

    def vread(t):
        k(f"s_mov_b64 exec, {sMask}")
        for hh in range(2):
            k(f"ds_read_b128 {Vf[t & 1][hh]}, {vVa} offset:{(2 * t + hh) * 512}")
        k("s_mov_b64 exec, -1")

    def pv(t, hh):
        c = "0" if (t == 0 and hh == 0) else str(O)
        k(f"v_mfma_f32_32x32x16_bf16 {O}, {Vf[t & 1][hh]}, {P[t & 1][4 * hh:4 * hh + 4]}, {c}")

    def pass2(first):
        kread(0); kread(1)
        k(f"v_mfma_f32_32x32x16_bf16 {Sx[0]}, {kf[0]}, {qf}, {Cb}")
        for t in range(65):
            s = Sx[t & 1]
            p = P[t & 1]
            if t + 2 == 32 and first:
                k.wait(vm=0)
                k("s_barrier")
            if t + 2 < 64:
                kread(t + 2)
            if t + 1 < 64:
                k(f"v_mfma_f32_32x32x16_bf16 {Sx[(t + 1) & 1]}, {kf[(t + 1) % 3]}, {qf}, {Cb}")
            if t < 64:
                vread(t)
                for r in range(8):
                    k(f"v_exp_f32 {s[r]}, {s[r]}")
            if t >= 1:
                pv(t - 1, 0)
            if t < 64:
                for r in range(8, 16):
                    k(f"v_exp_f32 {s[r]}, {s[r]}")
            if t >= 1:
                pv(t - 1, 1)
            if t < 64:
                for j in range(8):
                    k(f"v_cvt_pk_bf16_f32 {p[j]}, {s[2 * j]}, {s[2 * j + 1]}")

    pass2(True)
    thr = 2.0 ** float(os.environ.get("ATTN_THR", "-60"))
    k(f"v_cmp_gt_f32 vcc, {f32hex(thr)}, {O[8]}")
    k("s_cmp_lg_u64 vcc, 0")
    k("s_cbranch_scc0 L_a_done")
    k(f"v_mov_b32 {vM}, 0xff800000")
    kread(0); kread(1)
    for t in range(65):
        if t + 2 < 64:
            kread(t + 2)
        if t < 64:
            k(f"v_mfma_f32_32x32x16_bf16 {Sx[t & 1]}, {kf[t % 3]}, {qf}, 0")
        if t >= 1:
            s = Sx[(t - 1) & 1]
            for j in range(8):
                k(f"v_max3_f32 {vM}, {vM}, {s[2 * j]}, {s[2 * j + 1]}")
    k(f"v_mov_b32 {vT0}, {vM}")
    k(f"v_permlane32_swap_b32 {vM}, {vT0}")
    k(f"v_max_f32 {vM}, {vM}, {vT0}")
    for r in range(16):
        k(f"v_sub_f32 {Cb[r]}, 0, {vM}")
    pass2(False)
    k.label("L_a_done")
    k(f"v_rcp_f32 {vT0}, {O[8]}")
    for r in range(8):
        k(f"v_mul_f32 {O[r]}, {O[r]}, {vT0}")
    for j in range(4):
        k(f"v_cvt_pk_bf16_f32 {P[0][j]}, {O[2 * j]}, {O[2 * j + 1]}")
    k(f"v_and_b32 {vT0}, 31, {vLane}")
    k(f"v_lshrrev_b32 {vT1}, 5, {vLane}")
    k(f"v_lshlrev_b32 {vT0}, 10, {vT0}")
    k(f"v_lshl_add_u32 {vT0}, {vT1}, 3, {vT0}")
    k(f"s_lshl_b32 {sT}, {sQb}, 10")
    k(f"s_lshl_b32 {sT2}, {sH}, 5")
    k(f"s_add_u32 {sT}, {sT}, {sT2}")
    k(f"s_add_u32 {sT}, {sT}, {WS_O}")
    k(f"buffer_store_dwordx2 {P[0][0:2]}, {vT0}, {srdWS}, {sT} offen")
    k(f"buffer_store_dwordx2 {P[0][2:4]}, {vT0}, {srdWS}, {sT} offen offset:16")
    k("s_endpgm")
    k.label("L_a_conv")
    if os.environ.get("CONV_MODE") == "none":
        for _ in range(2):
            k("s_barrier")
        k("s_endpgm")
    k("s_sub_u32 s12, s12, 8")
    import kconv2
    kconv2.conv_role(k, R("s", 12), ())
    k.label("L_a_exit")
    k("s_endpgm")
    return k
```

```python
from asmlib import Kern, R
from common import *
from k1 import srd


def build():
    k = Kern("outp_kernel")
    k("s_cmp_ge_u32 s2, 256")
    k("s_cbranch_scc1 L_o_exit")
    sO, sW, sQ, sOut = R("s", 4, 2), R("s", 6, 2), R("s", 8, 2), R("s", 10, 2)
    srdWS, srdW, srdQ, srdOut = R("s", 12, 4), R("s", 16, 4), R("s", 20, 4), R("s", 24, 4)
    sMt, sNt, sWv, sT, sLdsW, sGA, sGB, sWr, sWc, sT2, sRow, sCol = (R("s", i) for i in range(28, 40))
    k(f"s_load_dwordx2 {sO}, s[0:1], {KA['ws']}")
    k(f"s_load_dwordx2 {sW}, s[0:1], {KA['wo']}")
    k(f"s_load_dwordx2 {sQ}, s[0:1], {KA['q']}")
    k(f"s_load_dwordx2 {sOut}, s[0:1], {KA['out']}")
    k.v.cur = 1
    vLane, vT0, vT1, vT2, vT3 = (k.v() for _ in range(5))
    vOffA = [k.v(), k.v()]
    vOffB = k.v()
    vXa = [k.v() for _ in range(4)]
    vWa = k.v()
    k(f"v_and_b32 {vLane}, 63, v0")
    k(f"v_lshrrev_b32 {vT0}, 6, v0")
    k(f"v_readfirstlane_b32 {sWv}, {vT0}")
    k(f"s_and_b32 {sT}, s2, 7")
    k(f"s_lshr_b32 {sT2}, s2, 3")
    k(f"s_lshr_b32 {sMt}, {sT2}, 3")
    k(f"s_lshl_b32 {sT}, {sT}, 2")
    k(f"s_add_u32 {sMt}, {sMt}, {sT}")
    k(f"s_and_b32 {sNt}, {sT2}, 7")
    k(f"s_lshr_b32 {sWr}, {sWv}, 1")
    k(f"s_and_b32 {sWc}, {sWv}, 1")
    k(f"v_lshrrev_b32 {vT0}, 3, {vLane}")
    k(f"v_and_b32 {vT1}, 7, {vLane}")
    k(f"v_lshrrev_b32 {vT2}, 4, {vLane}")
    k(f"v_xor_b32 {vT3}, {vT1}, {vT2}")
    k(f"v_lshlrev_b32 {vT3}, 4, {vT3}")
    k(f"v_lshl_add_u32 {vOffA[0]}, {vT0}, 10, {vT3}")
    k(f"v_xor_b32 {vOffA[1]}, 64, {vOffA[0]}")
    k(f"v_and_b32 {vT2}, 1, {vT2}")
    k(f"v_lshlrev_b32 {vT2}, 2, {vT2}")
    k(f"v_xor_b32 {vT3}, {vT1}, {vT2}")
    k(f"v_lshlrev_b32 {vT3}, 4, {vT3}")
    k(f"v_lshl_add_u32 {vOffB}, {vT0}, 10, {vT3}")
    k(f"v_and_b32 {vT0}, 31, {vLane}")
    k(f"v_lshrrev_b32 {vT1}, 5, {vLane}")
    k(f"v_lshrrev_b32 {vT2}, 1, {vT0}")
    k(f"v_and_b32 {vT2}, 7, {vT2}")
    k(f"s_lshl_b32 {sT}, {sWr}, 12")
    k(f"v_lshlrev_b32 {vT3}, 7, {vT0}")
    k(f"v_add_u32 {vT3}, {sT}, {vT3}")
    for kk in range(4):
        k(f"v_or_b32 {vWa}, {2 * kk}, {vT1}")
        k(f"v_xor_b32 {vWa}, {vWa}, {vT2}")
        k(f"v_lshl_add_u32 {vXa[kk]}, {vWa}, 4, {vT3}")
    k(f"v_lshrrev_b32 {vT0}, 4, {vLane}")
    k(f"v_and_b32 {vT1}, 15, {vLane}")
    k(f"v_lshrrev_b32 {vT2}, 2, {vT1}")
    k(f"v_and_b32 {vT1}, 3, {vT1}")
    k(f"v_lshrrev_b32 {vT3}, 1, {vT0}")
    k(f"v_lshl_add_u32 {vT3}, {vT3}, 3, {vT2}")
    k(f"v_lshlrev_b32 {vT3}, 7, {vT3}")
    k(f"v_add_u32 {vT3}, 8192, {vT3}")
    k(f"v_and_b32 {vWa}, 1, {vT1}")
    k(f"v_lshl_add_u32 {vT3}, {vWa}, 3, {vT3}")
    k(f"v_and_b32 {vT0}, 1, {vT0}")
    k(f"v_lshrrev_b32 {vT1}, 1, {vT1}")
    k(f"v_lshl_add_u32 {vT0}, {vT0}, 1, {vT1}")
    k(f"s_lshl_b32 {sT}, {sWc}, 2")
    k(f"v_add_u32 {vT0}, {sT}, {vT0}")
    k(f"v_lshrrev_b32 {vT2}, 1, {vT2}")
    k(f"v_lshlrev_b32 {vT2}, 2, {vT2}")
    k(f"v_xor_b32 {vT0}, {vT0}, {vT2}")
    k(f"v_lshl_add_u32 {vWa}, {vT0}, 4, {vT3}")
    k("s_waitcnt lgkmcnt(0)")
    srd(k, srdWS, sO, WS_END)
    srd(k, srdW, sW, D * D * 2)
    srd(k, srdQ, sQ, S * D * 2)
    srd(k, srdOut, sOut, S * D * 2)
    k(f"s_lshl_b32 {sLdsW}, {sWv}, 11")
    k(f"s_lshl_b32 {sT}, {sMt}, 6")
    k(f"s_lshl_b32 {sT2}, {sWv}, 4")
    k(f"s_add_u32 {sT}, {sT}, {sT2}")
    k(f"s_lshl_b32 {sGA}, {sT}, 10")
    k(f"s_add_u32 {sGA}, {sGA}, {WS_O}")
    k(f"s_lshl_b32 {sGB}, {sWv}, 14")
    k(f"s_lshl_b32 {sT}, {sNt}, 7")
    k(f"s_add_u32 {sGB}, {sGB}, {sT}")
    vS, vG, vOmg, vQo, vZo = (k.v() for _ in range(5))
    qv = [k.v(2, 2) for _ in range(4)]
    zv = k.v(16)
    k(f"v_and_b32 {vT0}, 31, {vLane}")
    k(f"v_lshrrev_b32 {vT1}, 5, {vLane}")
    k(f"s_lshl_b32 {sRow}, {sMt}, 6")
    k(f"s_lshl_b32 {sT}, {sWr}, 5")
    k(f"s_add_u32 {sRow}, {sRow}, {sT}")
    k(f"v_add_u32 {vS}, {sRow}, {vT0}")
    k(f"s_lshl_b32 {sCol}, {sNt}, 6")
    k(f"s_lshl_b32 {sT}, {sWc}, 5")
    k(f"s_add_u32 {sCol}, {sCol}, {sT}")
    k(f"v_lshlrev_b32 {vT2}, 2, {vS}")
    k(f"s_mov_b32 {sT}, {WS_G}")
    k(f"buffer_load_dword {vG}, {vT2}, {srdWS}, {sT} offen")
    k(f"v_lshlrev_b32 {vQo}, 10, {vS}")
    k(f"v_lshl_add_u32 {vQo}, {vT1}, 3, {vQo}")
    k(f"s_lshl_b32 {sT}, {sCol}, 1")
    k(f"v_add_u32 {vQo}, {sT}, {vQo}")
    for rg in range(4):
        k(f"buffer_load_dwordx2 {qv[rg]}, {vQo}, {srdQ}, 0 offen offset:{rg * 16}")
    k(f"v_lshlrev_b32 {vZo}, 1, {vS}")
    k(f"v_lshl_add_u32 {vZo}, {vT1}, 14, {vZo}")
    k(f"s_lshl_b32 {sT}, {sCol}, 12")
    k(f"s_add_u32 {sT}, {sT}, {WS_ZT}")
    for r in range(16):
        k(f"s_add_u32 {sT2}, {sT}, {((r & 3) + 8 * (r >> 2)) * 4096}")
        k(f"buffer_load_ushort {zv[r]}, {vZo}, {srdWS}, {sT2} offen")
    for st in range(8):
        for jj in range(2):
            k(f"s_add_u32 m0, {sLdsW}, {st * 16384 + jj * 1024}")
            k(f"s_add_u32 {sT}, {sGA}, {jj * 8192 + st * 128}")
            k(f"buffer_load_dwordx4 {vOffA[jj & 1]}, {srdWS}, {sT} offen lds")
        for jj in range(2):
            k(f"s_add_u32 m0, {sLdsW}, {st * 16384 + 8192 + jj * 1024}")
            k(f"s_add_u32 {sT}, {sGB}, {(jj * 8 + st * 64) * 1024}")
            k(f"buffer_load_dwordx4 {vOffB}, {srdW}, {sT} offen lds")
    acc = k.v(16, 2)
    xf = [k.v(4, 2) for _ in range(2)]
    wf = [k.v(4, 2) for _ in range(2)]

    def reads(i):
        st, kk = i // 4, i % 4
        b = i & 1
        if i == 16:
            for a in vXa + [vWa]:
                k(f"v_add_u32 {a}, 0x10000, {a}")
        so = (st % 4) * 16384
        k(f"ds_read_b128 {xf[b]}, {vXa[kk]} offset:{so}")
        k(f"ds_read_b64_tr_b16 {wf[b][0:2]}, {vWa} offset:{so + kk * 2048}")
        k(f"ds_read_b64_tr_b16 {wf[b][2:4]}, {vWa} offset:{so + kk * 2048 + 512}")

    k.wait(vm=28)
    k("s_barrier")
    reads(0)
    for i in range(32):
        if i + 1 < 32:
            if (i + 1) % 4 == 0:
                k.wait(vm=4 * (7 - (i + 1) // 4))
                k("s_barrier")
            reads(i + 1)
        c = "0" if i == 0 else str(acc)
        k(f"v_mfma_f32_32x32x16_bf16 {acc}, {wf[i & 1]}, {xf[i & 1]}, {c}")

    e = [k.v() for _ in range(8)]
    pk = k.v(2, 2)
    k(f"v_sub_f32 {vOmg}, 1.0, {vG}")
    k(f"v_cvt_pk_bf16_f32 {vOmg}, {vOmg}, {vOmg}")
    k(f"v_lshlrev_b32 {vOmg}, 16, {vOmg}")

    def unpack(lo, hi, src):
        k(f"v_lshlrev_b32 {lo}, 16, {src}")
        k(f"v_and_b32 {hi}, 0xffff0000, {src}")

    for rg in range(4):
        for pr in range(2):
            r0, r1 = 4 * rg + 2 * pr, 4 * rg + 2 * pr + 1
            unpack(e[0], e[1], qv[rg][pr])
            k(f"v_lshlrev_b32 {e[2]}, 16, {zv[r0]}")
            k(f"v_lshlrev_b32 {e[3]}, 16, {zv[r1]}")
            k(f"v_mul_f32 {e[0]}, {e[0]}, {e[2]}")
            k(f"v_mul_f32 {e[1]}, {e[1]}, {e[3]}")
            k(f"v_cvt_pk_bf16_f32 {e[4]}, {e[0]}, {e[1]}")
            unpack(e[0], e[1], e[4])
            k(f"v_mul_f32 {e[0]}, {vG}, {e[0]}")
            k(f"v_mul_f32 {e[1]}, {vG}, {e[1]}")
            k(f"v_cvt_pk_bf16_f32 {e[4]}, {e[0]}, {e[1]}")
            unpack(e[0], e[1], e[4])
            k(f"v_cvt_pk_bf16_f32 {e[5]}, {acc[r0]}, {acc[r1]}")
            unpack(e[2], e[3], e[5])
            k(f"v_mul_f32 {e[2]}, {vOmg}, {e[2]}")
            k(f"v_mul_f32 {e[3]}, {vOmg}, {e[3]}")
            k(f"v_cvt_pk_bf16_f32 {e[5]}, {e[2]}, {e[3]}")
            unpack(e[2], e[3], e[5])
            k(f"v_add_f32 {e[0]}, {e[0]}, {e[2]}")
            k(f"v_add_f32 {e[1]}, {e[1]}, {e[3]}")
            k(f"v_cvt_pk_bf16_f32 {pk[pr]}, {e[0]}, {e[1]}")
        k(f"buffer_store_dwordx2 {pk}, {vQo}, {srdOut}, 0 offen offset:{rg * 16}")
    k.label("L_o_exit")
    k("s_endpgm")
    return k
```

```python
import sys, os
sys.path.insert(0, os.path.dirname(__file__))
from asmlib import Kern, R
from common import *
import k1

HEADER = open(os.path.join(os.path.dirname(__file__), "..", "cdna_kernels",
              "gated_mix__ssm_conv_h3__softmax_full_mha__prompt.s.ref")).read().split("; Override launch geometry")[0]

kernels = []


def add(name, kern, grid, block, lds):
    kern.finalize()
    kernels.append((name, kern, grid, block, lds))


def build_k1(stages):
    k = Kern("proj_kernel")
    k("s_cmp_ge_u32 s2, 256")
    k("s_cbranch_scc1 L_p_exit")
    k("s_cmp_ge_u32 s2, 192")
    k("s_cbranch_scc1 L_prep")
    if os.environ.get("K1_MODE") == "prep":
        k("s_branch L_p_exit")
    k1.gemm_role(k)
    k.label("L_prep")
    if hasattr(k1, "prep_role") and "prep" in stages and os.environ.get("K1_MODE") != "gemm":
        k1.prep_role(k)
    k.label("L_p_exit")
    k("s_endpgm")
    return k


def main(stages, out):
    add("proj_kernel", build_k1(stages), (256, 1, 1), (512, 1, 1), 131072)
    try:
        import kattn
        if "attn" in stages:
            import kconv2
            add("attn_kernel", kattn.build(), (256, 1, 1), (768, 1, 1), kconv2.LDS_END)
    except ImportError:
        pass
    if "conv" in stages:
        import kconv
        add("conv_kernel", kconv.build(), kconv.GRID, kconv.BLOCK, kconv.LDS)
    if "out" in stages:
        import kout
        add("outp_kernel", kout.build(), (256, 1, 1), (256, 1, 1), 131072)
    txt = HEADER
    txt += "; Design: launch 1 = QKV projection GEMM (Q pre-scaled) + SSM prep (shift conv * v, transposed) + gate;\n"
    txt += "; launch 2 = attention (softmax shift = Cauchy-Schwarz bound on the row max, run-time check + exact two-pass fallback)\n"
    txt += ";            plus the long causal SSM convolution as Toeplitz MFMA GEMMs (4 extra waves per workgroup);\n"
    txt += "; launch 3 = output projection + gated mix.  Generated by a Python script (gen/).\n"
    txt += "; Launch list (run order).\n"
    for name, kern, grid, block, lds in kernels:
        txt += f"; @launch kernel={name} grid=({grid[0]},{grid[1]},{grid[2]}) block=({block[0]},{block[1]},{block[2]}) lds={lds}\n"
    txt += '.amdgcn_target "amdgcn-amd-amdhsa--gfx950"\n.text\n'
    for name, kern, grid, block, lds in kernels:
        txt += f".globl {name}\n.p2align 8\n.type {name},@function\n{name}:\n"
        txt += kern.text()
    txt += '.section .rodata,"a"\n'
    for name, kern, grid, block, lds in kernels:
        nv = (kern.v.hi + 7) // 8 * 8
        txt += f""".p2align 6
.amdhsa_kernel {name}
  .amdhsa_next_free_vgpr {nv}
  .amdhsa_next_free_sgpr 96
  .amdhsa_accum_offset {min(256, (nv + 3) // 4 * 4)}
  .amdhsa_group_segment_fixed_size 0
  .amdhsa_kernarg_size 104
  .amdhsa_user_sgpr_count 2
  .amdhsa_user_sgpr_kernarg_segment_ptr 1
  .amdhsa_system_sgpr_workgroup_id_x 1
.end_amdhsa_kernel
"""
        print(name, "vgprs", kern.v.hi, kern.stats())
    open(out, "w").write(txt)
    print("bytes", len(txt))


if __name__ == "__main__":
    stages = sys.argv[1].split(",") if len(sys.argv) > 1 else ["prep", "attn", "conv", "out"]
    out = sys.argv[2] if len(sys.argv) > 2 else os.path.join(os.path.dirname(__file__), "..", "cdna_kernels",
                                                             "gated_mix__ssm_conv_h3__softmax_full_mha__prompt.s")
    main(stages, out)
```
